```python
import torch

def _softmax(x, axis=-1):
    return torch.softmax(x, dim=axis)
def _gelu(x):
    return torch.nn.functional.gelu(x, approximate="tanh")
def _silu(x):
    return torch.nn.functional.silu(x)
def _sigmoid(x):
    return torch.sigmoid(x)
def _layernorm(x, axis=-1, eps=1e-5):
    m = x.mean(dim=axis, keepdim=True)
    v = x.var(dim=axis, keepdim=True, unbiased=False)
    return (x - m) / torch.sqrt(v + eps)
def _scatter_add(tgt, idx, src, axis=0):
    return tgt.clone().index_add_(axis, idx, src)
def _segment_sum(src, seg, n):
    out = torch.zeros((n,) + src.shape[1:], dtype=src.dtype)
    return out.index_add_(0, seg, src)
def _pad(x, pw):
    flat = tuple(v for pair in reversed(pw) for v in pair)
    return torch.nn.functional.pad(x, flat)

kernel_name = 'gated_mix__linear_kernel_hedgehog__sliding_block__prompt'

def setup_inputs():

    _w = (lambda a: (lambda t: t.to(torch.bfloat16) if t.is_floating_point() else t)(torch.as_tensor(a)))
    def _A_setup():
        B, S, D, H = 1, 2048, 448, 16
        Dh = D // H
        return {
            "x": _w((lambda *s: torch.randn(*s, dtype=torch.bfloat16) * 0.05)(B, S, D)),
            "wqkv": _w((lambda *s: torch.randn(*s, dtype=torch.bfloat16) * 3.2)(D, 3 * D)),
            "w_phi": _w((lambda *s: torch.randn(*s, dtype=torch.bfloat16) * 3.2)(H, Dh, Dh) * (Dh ** -0.5)),
            "wo": _w((lambda *s: torch.randn(*s, dtype=torch.bfloat16) * 0.1)(D, D)),
        }
    _A_in = _A_setup()

    def _B_setup():
        B, S, D = 1, 2048, 448
        return {
            "x": _w((lambda *s: torch.randn(*s, dtype=torch.bfloat16) * 0.05)(B, S, D)),
            "wqkv": _w((lambda *s: torch.randn(*s, dtype=torch.bfloat16) * 1.6)(D, 3 * D)),
            "wo": _w((lambda *s: torch.randn(*s, dtype=torch.bfloat16) * 0.05)(D, D)),
        }
    _B_in = _B_setup()

    return {
        "A_x": _A_in["x"],
        "A_wqkv": _A_in["wqkv"],
        "A_w_phi": _A_in["w_phi"],
        "A_wo": _A_in["wo"],
        "B_x": _B_in["x"],
        "B_wqkv": _B_in["wqkv"],
        "B_wo": _B_in["wo"],
        "gate_w": _w((lambda *s: torch.randn(*s, dtype=torch.bfloat16) * 0.05)(448) * 16.0),
    }

def reference(A_x, A_wqkv, A_w_phi, A_wo, B_x, B_wqkv, B_wo, gate_w):
    def _A_ref(x, wqkv, w_phi, wo):
        B, S, D = x.shape
        H = 16; Dh = D // H
        qkv = (lambda x, *d: x.permute(*d))((x @ wqkv).reshape(B, S, 3, H, Dh), 2, 0, 3, 1, 4)
        q, k, v = qkv[0], qkv[1], qkv[2]
        pq = torch.einsum("bhsd,hdf->bhsf", q, w_phi)
        pk = torch.einsum("bhsd,hdf->bhsf", k, w_phi)
        phi_q = torch.concatenate([_softmax(pq, axis=-1), _softmax(-pq, axis=-1)], axis=-1)
        phi_k = torch.concatenate([_softmax(pk, axis=-1), _softmax(-pk, axis=-1)], axis=-1)
        kv = torch.einsum("bhsf,bhsd->bhfd", phi_k, v)
        z  = torch.einsum("bhsf->bhf", phi_k)
        num = torch.einsum("bhqf,bhfd->bhqd", phi_q, kv)
        den = torch.einsum("bhqf,bhf->bhq", phi_q, z)[..., None] + 1e-6
        o = num / den
        return (lambda x, *d: x.permute(*d))(o, 0, 2, 1, 3).reshape(B, S, D) @ wo

    def _B_ref(x, wqkv, wo):
        B, S, D = x.shape
        H = 16; Dh = D // H; W = 256
        qkv = (lambda x, *d: x.permute(*d))((x @ wqkv).reshape(B, S, 3, H, Dh), 2, 0, 3, 1, 4)
        q, k, v = qkv[0], qkv[1], qkv[2]
        scores = torch.einsum("bhqd,bhkd->bhqk", q, k) * (Dh ** -0.5)
        idx = torch.arange(S)
        mask = (idx[:, None] - idx[None, :] >= 0) & (idx[:, None] - idx[None, :] < W)
        scores = torch.where(mask[None, None], scores, -1e9)
        p = _softmax(scores, axis=-1)
        o = torch.einsum("bhqk,bhkd->bhqd", p, v)
        return (lambda x, *d: x.permute(*d))(o, 0, 2, 1, 3).reshape(B, S, D) @ wo

    x = A_x
    g = _sigmoid((x * gate_w).sum(-1, keepdims=True))
    a = _A_ref(x, A_wqkv, A_w_phi, A_wo)
    b = _B_ref(x, B_wqkv, B_wo)
    return g * a + (1 - g) * b
```

```python
import re

TRANS = ("v_exp_f32", "v_log_f32", "v_rcp_f32", "v_rsq_f32", "v_sqrt_f32", "v_sin_f32", "v_cos_f32", "v_rcp_iflag_f32")


def regs_of(op):
    op = op.strip()
    op = re.sub(r"^-|^abs\(|\)$|^\|", "", op).rstrip("|")
    m = re.fullmatch(r"([vsa])(\d+)", op)
    if m:
        return {(m.group(1), int(m.group(2)))}
    m = re.fullmatch(r"([vsa])\[(\d+):(\d+)\]", op)
    if m:
        return {(m.group(1), i) for i in range(int(m.group(2)), int(m.group(3)) + 1)}
    if op in ("vcc", "vcc_lo", "vcc_hi"):
        return {("x", "vcc")}
    if op in ("exec", "exec_lo", "exec_hi"):
        return {("x", "exec")}
    if op == "m0":
        return {("x", "m0")}
    return set()


def split_ops(s):
    out, depth, cur = [], 0, ""
    for ch in s:
        if ch in "[(":
            depth += 1
        if ch in "])":
            depth -= 1
        if ch == "," and depth == 0:
            out.append(cur.strip()); cur = ""
        else:
            cur += ch
    if cur.strip():
        out.append(cur.strip())
    return out


class I:
    __slots__ = ("text", "mn", "kind", "w", "r", "passes", "srcc", "srcab", "data", "lds", "ws", "target", "wide")

    def __init__(self, text):
        self.text = text
        t = text.split(";")[0].strip()
        self.w = set(); self.r = set(); self.passes = 0; self.srcc = set(); self.srcab = set()
        self.data = set(); self.lds = False; self.ws = 1; self.target = None; self.wide = False
        if t.endswith(":"):
            self.kind = "label"; self.mn = t[:-1]; self.ws = 0
            return
        if t.startswith(".") or not t:
            self.kind = "dir"; self.mn = t; self.ws = 0
            return
        sp = t.split(None, 1)
        mn = sp[0]
        rest = sp[1] if len(sp) > 1 else ""
        self.mn = mn
        base = re.sub(r"_(e32|e64|dpp|sdwa)$", "", mn)
        ops = split_ops(rest)
        mods = ""
        if ops:
            parts = ops[-1].split(None, 1)
            if len(parts) > 1 and not ops[-1].startswith("vmcnt") and not ops[-1].startswith("lgkmcnt"):
                ops[-1] = parts[0]; mods = parts[1]
        R = [regs_of(o) for o in ops]
        un = lambda l: set().union(*l) if l else set()
        if base.startswith("v_mfma"):
            self.kind = "mfma"
            self.passes = 8 if "32x32" in base else 4
            self.w = R[0]; self.srcab = R[1] | R[2]; self.srcc = R[3]; self.r = self.srcab | self.srcc
        elif base.startswith("v_"):
            self.kind = "valu"
            if base.startswith("v_permlane") and "swap" in base:
                self.w = R[0] | R[1]; self.r = R[0] | R[1]
            elif base in ("v_add_co_u32", "v_sub_co_u32", "v_addc_co_u32"):
                self.w = R[0] | R[1]; self.r = un(R[2:])
            else:
                self.w = R[0]; self.r = un(R[1:])
                if base.startswith("v_fmac") or base.startswith("v_dot2c") or base == "v_writelane_b32":
                    self.r |= R[0]
            if base.startswith("v_cmpx"):
                self.w |= {("x", "exec")}
        elif base.startswith("ds_"):
            self.kind = "ds"
            if base.startswith("ds_read") or base.startswith("ds_bpermute"):
                self.w = R[0]; self.r = un(R[1:])
            else:
                self.r = un(R)
        elif base.startswith("buffer_") or base.startswith("global_"):
            self.kind = "vm"
            if "load" in base:
                if re.search(r"\blds\b", mods) or "_lds_" in base:
                    self.lds = True; self.r = un(R) | {("x", "m0")}
                else:
                    self.w = R[0]; self.r = un(R[1:])
                    if "d16" in base:
                        self.r |= R[0]
            elif "store" in base or "atomic" in base:
                self.r = un(R)
                self.data = R[0] if base.startswith("buffer_") else R[1]
                self.wide = base.endswith("x4") or base.endswith("x3")
                if "atomic" in base and re.search(r"\bsc0\b", mods):
                    self.w = R[0]
            else:
                pass
        elif base.startswith("s_load") or base.startswith("s_buffer_load") or base in ("s_memtime", "s_memrealtime"):
            self.kind = "smem"; self.w = R[0]; self.r = un(R[1:])
        elif base == "s_nop":
            self.kind = "nop"; self.ws = int(ops[0], 0) + 1
        elif base == "s_waitcnt":
            self.kind = "wait"
        elif base.startswith("s_cbranch") or base == "s_branch":
            self.kind = "branch"; self.target = ops[0]
        elif base in ("s_barrier", "s_endpgm", "s_setprio", "s_sleep"):
            self.kind = "misc"
        elif base.startswith("s_"):
            self.kind = "salu"
            if base.startswith("s_cmp") or base.startswith("s_bitcmp"):
                self.r = un(R)
            else:
                self.w = R[0]; self.r = un(R[1:])
                if "saveexec" in base:
                    self.w |= {("x", "exec")}
        else:
            raise ValueError("cannot parse: " + text)

    @property
    def base(self):
        return re.sub(r"_(e32|e64|dpp|sdwa)$", "", self.mn)


def need(p, c):
    n = 0
    isv = lambda s: {x for x in s if x[0] in "va"}
    iss = lambda s: {x for x in s if x[0] == "s" or x == ("x", "vcc")}
    if p.kind == "valu":
        pv = isv(p.w); ps = iss(p.w)
        if c.kind == "mfma" and pv & c.r:
            n = max(n, 2)
        if c.kind == "valu":
            if (c.base.startswith("v_permlane") or c.mn.endswith("dpp") or "row_" in c.text or "quad_perm" in c.text) and pv & c.r:
                n = max(n, 2)
            if c.base in ("v_readfirstlane_b32", "v_readlane_b32") and pv & c.r:
                n = max(n, 1)
            if p.base in TRANS and (pv & c.r):
                n = max(n, 1)
            if ps & c.r:
                n = max(n, 4 if c.base in ("v_readlane_b32", "v_writelane_b32") else 2)
            if ("op_sel" in p.text and "pk_" not in p.mn or p.mn.endswith("sdwa")) and pv & (c.r | c.w):
                n = max(n, 1)
        if c.kind == "vm" and ps & c.r:
            n = max(n, 5)
        if c.kind in ("salu", "smem", "branch") and ps & c.r:
            n = max(n, 1)
        if c.kind == "branch" and "vcc" in c.mn and ("x", "vcc") in p.w:
            n = max(n, 1)
        if c.kind in ("vm", "ds") and p.base in TRANS and pv & c.r:
            n = max(n, 1)
    if p.kind == "mfma":
        big = 12 if p.passes == 8 else 8
        if c.kind == "mfma":
            if p.w & c.srcab:
                n = max(n, big)
            if p.w & c.srcc and not (p.w == c.srcc and p.passes == c.passes):
                n = max(n, p.passes + 2)
        elif c.kind in ("valu", "vm", "ds"):
            if p.w & (c.r | c.w):
                n = max(n, big)
            if c.kind == "valu" and p.srcc & c.w:
                n = max(n, 7 if p.passes == 8 else 3)
            if c.kind in ("vm", "ds") and p.srcc & c.w:
                n = max(n, 7 if p.passes == 8 else 3)
    if p.kind == "salu" and ("x", "m0") in p.w and c.kind == "vm" and c.lds:
        n = max(n, 1)
    if p.kind == "vm" and p.wide and p.data & c.w:
        n = max(n, 2)
    return n


class K:
    def __init__(self):
        self.ins = []
        self.vmq = []
        self.lgq = []
        self.nvm = 0
        self.nlg = 0

    def __call__(self, *texts):
        last = None
        for text in texts:
            for line in text.split("\n"):
                if not line.strip():
                    continue
                i = I(line.strip())
                self.ins.append(i)
                if i.kind == "vm":
                    self.nvm += 1; last = ("vm", self.nvm)
                elif i.kind == "ds":
                    self.nlg += 1; last = ("lg", self.nlg)
        return last

    def uncounted(self, text):
        self.ins.append(I(text))

    def wait(self, vm=None, lg=None):
        parts = []
        if vm is not None:
            n = self.nvm - vm[1] if vm != 0 else 0
            assert 0 <= n <= 63, n
            parts.append(f"vmcnt({n})")
        if lg is not None:
            n = self.nlg - lg[1] if lg != 0 else 0
            assert n >= 0
            parts.append(f"lgkmcnt({min(n, 15)})")
        self("s_waitcnt " + " ".join(parts))

    def state(self):
        return (self.nvm, self.nlg)

    def restore(self, st):
        self.nvm, self.nlg = st

    def pad_hazards(self, verbose=False):
        WIN = 13
        total = 0
        start = 0
        while True:
            ins = self.ins
            labels = {x.mn: n for n, x in enumerate(ins) if x.kind == "label"}
            fix = None
            for n in range(start, len(ins)):
                p = ins[n]
                if p.kind not in ("valu", "mfma", "salu", "vm"):
                    continue
                win = WIN if p.kind == "mfma" else 5
                stack = [(n + 1, 0)]
                seen = {}
                while stack:
                    j, d = stack.pop()
                    while j < len(ins) and d < win:
                        if seen.get(j, 99) <= d:
                            break
                        seen[j] = d
                        c = ins[j]
                        if c.ws:
                            m = need(p, c) - d
                            if m > 0 and (fix is None or (j, -m) < (fix[0], -fix[1])):
                                fix = (j, m)
                            d += c.ws
                        if c.mn == "s_endpgm":
                            break
                        if c.kind == "branch":
                            assert c.target in labels, c.text
                            stack.append((labels[c.target], d))
                            if c.mn == "s_branch":
                                break
                        j += 1
                if fix:
                    start = n + (1 if fix[0] <= n else 0)
                    break
            if not fix:
                out = []
                for x in self.ins:
                    if x.kind == "nop" and out and out[-1].kind == "nop" and out[-1].ws + x.ws <= 16:
                        out[-1] = I(f"s_nop {out[-1].ws + x.ws - 1}")
                    else:
                        out.append(x)
                self.ins = out
                return total
            j, m = fix
            if verbose:
                print("pad", m, "before", ins[j].text)
            self.ins = ins[:j] + [I(f"s_nop {m - 1}")] + ins[j:]
            total += m

    def check_waits(self):
        vm, lg = [], []
        errs = []
        for x in self.ins:
            if "; spin" in x.text:
                continue
            if x.kind == "branch" and x.mn == "s_branch" or x.mn == "s_endpgm":
                vm, lg = [], []
                continue
            if x.kind == "wait":
                m = re.search(r"vmcnt\((\d+)\)", x.text)
                if m:
                    n = int(m.group(1)); vm = vm[len(vm) - n:] if n < len(vm) else vm
                    if n == 0: vm = []
                m = re.search(r"lgkmcnt\((\d+)\)", x.text)
                if m:
                    n = int(m.group(1))
                    if n == 0:
                        lg = []
                    elif not any(y.kind == "smem" for y in lg):
                        lg = lg[len(lg) - n:] if n < len(lg) else lg
                continue
            touched = x.r | x.w
            for y in vm + lg:
                if y.w & touched and not (x.kind == y.kind and "dummy" in x.text and "dummy" in y.text):
                    errs.append(f"{x.text}   <- pending {y.text}")
            if x.kind == "vm":
                vm.append(x)
            elif x.kind == "ds" or (x.kind == "smem" and "memtime" not in x.mn and "memrealtime" not in x.mn):
                lg.append(x)
        return errs

    def text(self):
        out = []
        for x in self.ins:
            out.append(x.text if x.kind in ("label", "dir") else "    " + x.text)
        return "\n".join(out) + "\n"
```

```python
import sys, math, struct
sys.path.insert(0, "tools")
from asmdsl import K, I

NAME = "gated_mix__linear_kernel_hedgehog__sliding_block__prompt"


def f2u(x):
    return struct.unpack("<I", struct.pack("<f", x))[0]


LOG2E = 1.4426950408889634
CSC = LOG2E * (28 ** -0.5)

WS_FLAG = 0
WS_STAMP = 0x10000
WS_KB = 0x100000
WS_VB = 0x300000
WS_PART = 0x500000
WS_O = 0x600000
WS_DUMP = 0xA00000
WS_BYTES = 0x2000000

L_X = 0
L_KR = 65536
L_WR = 98304
L_SP = 155648
L_TOTAL = 163840
L_KA = 0
L_VA = 49152
L_PHI = 0
L_VF = 32768
L_KVX = L_SP + 0
L_W2A = L_WR
L_W2B = 0
L_EX = 65536

sW_, sBR, sHP, sTB, sTT, sHH, sROT = 3, 4, 5, 6, 7, 8, 9
sT0, sT1, sT2, sT3 = 10, 11, 12, 13
sW1K, sW2K = 14, 15
SRD_X, SRD_W, SRD_WS, SRD_M, SRD_O, SRD_A, SRD_B, SRD_D, SRD_Z = 40, 44, 48, 52, 56, 60, 64, 68, 72
sXO = 76
sWO = 83
sMASK = 90
sONES = 92
sWGL = 93
sCNT = 94
sRB, sCB = 95, 96
sNEG = 97
sST = 16


def srd(n):
    return f"s[{n}:{n+3}]"


def vr(a, n=1):
    return f"v{a}" if n == 1 else f"v[{a}:{a+n-1}]"


vL = 0
vX0, vX1, vWK, vWV, vWQ = 1, 2, 3, 4, 5
vXR = 6
vWR = 10
vLO = 11
vL16 = 12
vT0, vT1, vT2 = 13, 14, 15
X = 16
WF = 128
ACA, ACB = 160, 176
vG = 192
vM28 = 193
vC = 194
vB = 196
vPOLL = 198
vGA = 199
F8 = 200
R16A = 208
R16B = 224
WPH = 240
vU = 248


class Gen:
    def __init__(self, opt):
        self.o = opt
        self.k = K()
        self.nstamp = 0

    def stamp(self):
        if not self.o.get("stamps"):
            return
        n = self.nstamp
        assert n < 12
        self.k(f"s_memtime s[{sST+2*n}:{sST+2*n+1}]")
        self.nstamp += 1

    def prologue(self):
        k = self.k
        k("s_cmp_ge_u32 s2, 256")
        k("s_cbranch_scc0 L_go")
        k("s_endpgm")
        k("L_go:")
        k("s_load_dwordx16 s[16:31], s[0:1], 0")
        k("s_load_dwordx4 s[32:35], s[0:1], 64")
        k("s_load_dwordx2 s[36:37], s[0:1], 80")
        if self.o.get("stamps"):
            k("s_memtime s[98:99]")
        if self.o.get("warm", 1):
            k("s_getpc_b64 s[38:39]")
            k(f"v_lshlrev_b32 v{vT0}, 7, v0")
            k(f"v_min_u32 v{vT0}, CODE_BYTES, v{vT0}")
            k(f"v_cmp_gt_u32 vcc, 256, v0")
            k("s_and_saveexec_b64 s[10:11], vcc")
            k("s_cbranch_execz L_nowarm")
            k.uncounted(f"global_load_dword v{vU+7}, v{vT0}, s[38:39]")
            k("L_nowarm:")
            k("s_mov_b64 exec, s[10:11]")
        k(f"v_lshrrev_b32 v{vT0}, 6, v0")
        k(f"v_and_b32 v{vL}, 63, v0")
        k(f"v_readfirstlane_b32 s{sW_}, v{vT0}")
        k(f"s_and_b32 s{sBR}, s2, 1")
        k(f"s_bfe_u32 s{sT0}, s2, 0x20001")
        k(f"s_bfe_u32 s{sHP}, s2, 0x30003")
        k(f"s_lshr_b32 s{sT1}, s2, 6")
        k(f"s_lshl_b32 s{sTB}, s{sT0}, 2")
        k(f"s_add_u32 s{sTB}, s{sTB}, s{sT1}")
        k(f"s_lshl_b32 s{sWGL}, s{sBR}, 3")
        k(f"s_add_u32 s{sWGL}, s{sWGL}, s{sHP}")
        k(f"s_lshl_b32 s{sWGL}, s{sWGL}, 4")
        k(f"s_add_u32 s{sWGL}, s{sWGL}, s{sTB}")
        if self.o.get("rot", 1):
            k(f"s_lshl_b32 s{sT1}, s{sT1}, 1")
            k(f"s_add_u32 s{sROT}, s{sHP}, s{sT1}")
            k(f"s_cmp_ge_u32 s{sROT}, 7")
            k(f"s_cselect_b32 s{sT1}, 7, 0")
            k(f"s_sub_u32 s{sROT}, s{sROT}, s{sT1}")
        else:
            k(f"s_mov_b32 s{sROT}, 0")
        for j in range(7):
            k(f"s_add_u32 s{sT0}, s{sROT}, {j}")
            k(f"s_cmp_ge_u32 s{sT0}, 7")
            k(f"s_cselect_b32 s{sT1}, 7, 0")
            k(f"s_sub_u32 s{sT0}, s{sT0}, s{sT1}")
            k(f"s_lshl_b32 s{sXO+j}, s{sT0}, 7")
            k(f"s_mul_i32 s{sWO+j}, s{sT0}, {64*2688}")
        k(f"s_and_b32 s{sTT}, s{sW_}, 3")
        k(f"s_lshr_b32 s{sHH}, s{sW_}, 2")
        k(f"s_lshl_b32 s{sW1K}, s{sW_}, 10")
        k(f"s_lshl_b32 s{sW2K}, s{sW_}, 11")
        k(f"s_mov_b32 s{sMASK}, 0xf7f77f7f")
        k(f"s_mov_b32 s{sMASK+1}, 0xf7f77f7f")
        k(f"v_lshrrev_b32 v{vT0}, 3, v{vL}")
        k(f"v_and_b32 v{vT1}, 7, v{vL}")
        k(f"v_lshrrev_b32 v{vT2}, 4, v{vL}")
        k(f"v_xor_b32 v{vT2}, v{vT2}, v{vT1}")
        k(f"s_lshl_b32 s{sT0}, s{sTB}, 7")
        k(f"s_lshl_b32 s{sT1}, s{sW_}, 4")
        k(f"s_add_u32 s{sT0}, s{sT0}, s{sT1}")
        k(f"v_add_u32 v{vX0}, s{sT0}, v{vT0}")
        k(f"v_mul_u32_u24 v{vX0}, 896, v{vX0}")
        k(f"v_lshl_add_u32 v{vX0}, v{vT2}, 4, v{vX0}")
        k(f"v_xor_b32 v{vX1}, 64, v{vX0}")
        k(f"v_add_u32 v{vX1}, {8*896}, v{vX1}")
        k(f"v_lshlrev_b32 v{vT2}, 1, v{vT0}")
        k(f"v_and_b32 v{vT2}, 4, v{vT2}")
        k(f"v_xor_b32 v{vT2}, v{vT2}, v{vT1}")
        k(f"v_min_u32 v{vT2}, 6, v{vT2}")
        k(f"s_lshl_b32 s{sT0}, s{sW_}, 3")
        k(f"v_add_u32 v{vWQ}, s{sT0}, v{vT0}")
        k(f"v_mul_u32_u24 v{vWQ}, 2688, v{vWQ}")
        k(f"v_lshl_add_u32 v{vWQ}, v{vT2}, 4, v{vWQ}")
        k(f"s_mul_i32 s{sT0}, s{sHP}, 112")
        k(f"v_add_u32 v{vWQ}, s{sT0}, v{vWQ}")
        k(f"v_add_u32 v{vWK}, 896, v{vWQ}")
        k(f"v_add_u32 v{vWV}, 1792, v{vWQ}")
        k("s_waitcnt lgkmcnt(0)")
        def mk(d, p, nbytes):
            k(f"s_mov_b32 s{d}, s{p}")
            k(f"s_mov_b32 s{d+1}, s{p+1}")
            k(f"s_mov_b32 s{d+2}, {nbytes}")
            k(f"s_mov_b32 s{d+3}, 0x20000")
        mk(SRD_X, 16, 2048 * 896)
        k(f"s_cmp_eq_u32 s{sBR}, 0")
        k(f"s_cselect_b32 s{SRD_W}, s18, s26")
        k(f"s_cselect_b32 s{SRD_W+1}, s19, s27")
        k(f"s_mov_b32 s{SRD_W+2}, {448*2688}")
        k(f"s_mov_b32 s{SRD_W+3}, 0x20000")
        mk(SRD_WS, 36, WS_BYTES)
        k(f"s_or_b32 s{sT0}, s2, s{sW_}")
        k(f"s_cmp_eq_u32 s{sT0}, 0")
        k("s_cbranch_scc0 L_nozero")
        k(f"v_lshlrev_b32 v{vT0}, 7, v{vL}")
        k(f"v_mov_b32 v{vT1}, 0")
        for i in range(4):
            k(f"s_mov_b32 s{sT0}, {WS_FLAG + i*8192}")
            k.uncounted(f"buffer_store_dword v{vT1}, v{vT0}, {srd(SRD_WS)}, s{sT0} offen sc1")
        k("L_nozero:")
        self.tokx = {}
        self.toku = {}
        for s in range(4):
            self.dma_step(s)
        mk(SRD_M, 30, 896)
        k(f"s_add_u32 s{sT0}, s{sROT}, s{sW_}")
        k(f"s_cmp_ge_u32 s{sT0}, 7")
        k(f"s_cselect_b32 s{sT1}, 7, 0")
        k(f"s_sub_u32 s{sT0}, s{sT0}, s{sT1}")
        k(f"s_lshl_b32 s{sT0}, s{sT0}, 7")
        k(f"v_lshlrev_b32 v{vT0}, 1, v{vL}")
        self.tokg = k(f"buffer_load_ushort v{vU}, v{vT0}, {srd(SRD_M)}, s{sT0} offen")
        mk(SRD_Z, 20, 16 * 1568)
        k(f"s_mul_i32 s{sT0}, s{sHP}, 3136")
        k(f"s_add_u32 s{SRD_Z+2}, s{sT0}, 3136")
        k(f"s_add_u32 s{sT0}, s{sT0}, s{sW1K}")
        k(f"v_lshlrev_b32 v{vL16}, 4, v{vL}")
        k(f"s_add_u32 m0, s{sW1K}, {L_SP}")
        self.tokp = k(f"buffer_load_dwordx4 v{vL16}, {srd(SRD_Z)}, s{sT0} offen lds")
        mk(SRD_O, 32, 2048 * 896)
        mk(SRD_A, 22, 448 * 896)
        mk(SRD_B, 28, 448 * 896)
        mk(SRD_D, 34, 256)
        k(f"v_and_b32 v{vT0}, 31, v{vL}")
        k(f"v_lshrrev_b32 v{vT1}, 5, v{vL}")
        k(f"v_bfe_u32 v{vT2}, v{vL}, 1, 3")
        k(f"v_xor_b32 v{vT2}, v{vT2}, v{vT1}")
        k(f"v_lshlrev_b32 v{vT2}, 4, v{vT2}")
        k(f"v_lshl_add_u32 v{vT2}, v{vT0}, 7, v{vT2}")
        k(f"s_lshl_b32 s{sT0}, s{sTT}, 12")
        k(f"v_add_u32 v{vXR}, s{sT0}, v{vT2}")
        for j in range(1, 4):
            k(f"v_xor_b32 v{vXR+j}, {32*j}, v{vXR}")
        k(f"v_add_u32 v{vLO}, -1, v{vT1}")
        k(f"v_and_b32 v{vT0}, 3, v{vL}")
        k(f"v_bfe_u32 v{vT2}, v{vL}, 4, 1")
        k(f"v_lshl_add_u32 v{vT0}, v{vT2}, 2, v{vT0}")
        k(f"v_mov_b32 v{vU+1}, v{vT0}")
        k(f"s_mul_i32 s{sT0}, s{sHH}, 56")
        k(f"v_lshlrev_b32 v{vT0}, 3, v{vT0}")
        k(f"v_add_u32 v{vT0}, s{sT0}, v{vT0}")
        k(f"v_add_u32 v{vT2}, 1, v{vU+1}")
        k(f"v_lshrrev_b32 v{vT2}, 3, v{vT2}")
        k(f"s_xor_b32 s{sT0}, s{sHH}, 1")
        k(f"s_lshl_b32 s{sT0}, s{sT0}, 6")
        k(f"v_mul_u32_u24 v{vT2}, s{sT0}, v{vT2}")
        k(f"v_add_u32 v{vT0}, v{vT2}, v{vT0}")
        k(f"v_bfe_u32 v{vT2}, v{vL}, 3, 1")
        k(f"v_lshlrev_b32 v{vT2}, 6, v{vT2}")
        k(f"v_xor_b32 v{vT0}, v{vT2}, v{vT0}")
        k(f"v_bfe_u32 v{vT2}, v{vL}, 2, 2")
        k(f"v_lshl_add_u32 v{vT2}, v{vT1}, 3, v{vT2}")
        k(f"v_lshl_add_u32 v{vWR}, v{vT2}, 7, v{vT0}")
        k(f"v_add_u32 v{vWR}, {L_KR}, v{vWR}")
        k(f"v_and_b32 v{vT0}, 31, v{vL}")
        k(f"v_cmp_eq_u32 vcc, 28, v{vT0}")
        k(f"v_cndmask_b32 v{vM28}, 0, -1, vcc")
        k(f"s_mov_b32 s{sONES}, 0x3f803f80")
        k(f"v_bfe_u32 v{vT0}, v{vL}, 1, 1")
        k(f"v_lshlrev_b32 v{vT0}, 6, v{vT0}")
        k(f"v_xor_b32 v{vT0}, 112, v{vT0}")
        k(f"v_lshl_add_u32 v{vT0}, v{vL}, 7, v{vT0}")
        k(f"s_lshl_b32 s{sT0}, s{sW_}, 13")
        k(f"s_add_u32 s{sT0}, s{sT0}, {L_WR}")
        k(f"v_add_u32 v{vGA}, s{sT0}, v{vT0}")

    def dma_step(self, s):
        k = self.k
        k(f"s_add_u32 m0, s{sW2K}, {L_X + (s % 4) * 16384}")
        k(f"buffer_load_dwordx4 v{vX0}, {srd(SRD_X)}, s{sXO+s} offen lds")
        k(f"s_add_u32 m0, s{sW2K}, {L_X + (s % 4) * 16384 + 1024}")
        k(f"buffer_load_dwordx4 v{vX1}, {srd(SRD_X)}, s{sXO+s} offen lds")
        k(f"s_add_u32 m0, s{sW1K}, {L_KR + (s % 4) * 8192}")
        self.tokx[s] = k(f"buffer_load_dwordx4 v{vWK}, {srd(SRD_W)}, s{sWO+s} offen lds")

    def dma_unit(self, u):
        k = self.k
        j = u % 7
        k(f"s_add_u32 m0, s{sW1K}, {L_WR + j * 8192}")
        k(f"s_mov_b64 exec, s[{sMASK}:{sMASK+1}]")
        self.toku[u] = k(f"buffer_load_dwordx4 v{vWV if u < 7 else vWQ}, {srd(SRD_W)}, s{sWO+j} offen lds")
        k("s_mov_b64 exec, -1")

    def mfma_step(self, s):
        out = []
        m, c = divmod(s, 7)
        acc = ACB if m == 1 else ACA
        for j in range(4):
            xf = vr(X + (4 * c + j) * 4, 4)
            wf = vr(WF + (s % 2) * 16 + 4 * j, 4)
            cin = "0" if (c == 0 and j == 0) else vr(acc, 16)
            a, b = (xf, wf) if m == 1 else (wf, xf)
            out.append(f"v_mfma_f32_32x32x16_bf16 {vr(acc,16)}, {a}, {b}, {cin}")
        return out

    def gemm_step(self, s, bg=None, pre=None, post=None, extra_vm=None):
        k = self.k
        RA = self.o.get("ra", 4)
        bg = bg if bg is not None else []
        if s <= 20:
            tok = self.tokx[s] if s < 7 else self.toku[s - 7]
            if extra_vm is not None and extra_vm[1] > tok[1]:
                tok = extra_vm
            if pre:
                pre()
            k.wait(vm=tok)
            k("s_barrier")
            if 1 <= s <= 3:
                self.dma_step(s + 3)
            for u in range(14):
                if max(4, 7 + u - RA) == s:
                    self.dma_unit(u)
            if post:
                post()
            if s == 7:
                k(f"v_add_u32 v{vWR}, {L_WR - L_KR}, v{vWR}")
            base = (s % 4) * 8192 if s < 7 else ((s - 7) % 7) * 8192
            for j in range(4):
                d = WF + (s % 2) * 16 + 4 * j
                if s < 7:
                    k(f"ds_read_b128 {vr(X + (4*s+j)*4, 4)}, v{vXR+j} offset:{L_X + (s % 4) * 16384}")
                k(f"ds_read_b64_tr_b16 {vr(d,2)}, v{vWR} offset:{base + j*2048}")
                k(f"ds_read_b64_tr_b16 {vr(d+2,2)}, v{vWR} offset:{base + j*2048 + 512}")
        mf = self.mfma_step(s - 1) if s >= 1 else []
        n = len(bg)
        per = -(-n // max(len(mf), 1))
        for i, m in enumerate(mf):
            k(m)
            for g in bg[i * per:(i + 1) * per]:
                k(g)
        if not mf:
            for g in bg:
                k(g)
        if s <= 20:
            k("s_waitcnt lgkmcnt(0)")

    def pack16(self, src, dst):
        return [f"v_cvt_pk_bf16_f32 v{dst+i}, v{src+2*i}, v{src+2*i+1}" for i in range(8)]

    def zero_pad(self, dst):
        return [f"v_and_b32 v{dst+6}, v{vLO}, v{dst+6}", f"v_and_b32 v{dst+7}, v{vLO}, v{dst+7}"]

    def set_flag(self, val, tag):
        k = self.k
        k(f"s_cmp_eq_u32 s{sW_}, 0")
        k(f"s_cbranch_scc0 L_nf_{tag}")
        k(f"s_lshl_b32 s{sT0}, s{sWGL}, 7")
        k(f"v_mov_b32 v{vT0}, 0")
        k(f"v_mov_b32 v{vT1}, {val}")
        k("s_mov_b64 exec, 1")
        k.uncounted(f"buffer_store_dword v{vT1}, v{vT0}, {srd(SRD_WS)}, s{sT0} offen sc1")
        k("s_mov_b64 exec, -1")
        k(f"L_nf_{tag}:")

    def poll(self, tag, val, setup):
        k = self.k
        k(f"s_cmp_eq_u32 s{sW_}, 0")
        k(f"s_cbranch_scc0 L_pd_{tag}")
        setup()
        k(f"s_cbranch_execz L_pe_{tag}")
        k(f"s_mov_b32 s{sCNT}, 0")
        k(f"L_pl_{tag}:")
        k.uncounted(f"buffer_load_dword v{vT0}, v{vPOLL}, {srd(SRD_WS)}, 0 offen sc1")
        k(f"s_add_u32 s{sCNT}, s{sCNT}, 1")
        k("s_waitcnt vmcnt(0)")
        k(f"v_cmp_gt_u32 vcc, {val}, v{vT0}")
        k(f"s_cmp_lt_u32 s{sCNT}, 0x8000")
        k(f"s_cbranch_scc0 L_pe_{tag}")
        k(f"s_cbranch_vccnz L_pl_{tag}")
        k(f"L_pe_{tag}:")
        k("s_mov_b64 exec, -1")
        k(f"L_pd_{tag}:")

    def announce(self):
        k = self.k
        k(f"s_or_b32 s{sT0}, s2, s{sW_}")
        k(f"s_cmp_eq_u32 s{sT0}, 0")
        k("s_cbranch_scc0 L_noann")
        k(f"v_mov_b32 v{vT0}, 0")
        k(f"v_mov_b32 v{vT1}, 1")
        k("s_mov_b64 exec, 1")
        k.uncounted(f"buffer_store_dword v{vT1}, v{vT0}, {srd(SRD_D)}, 0 offen sc1")
        k("s_mov_b64 exec, -1")
        k("L_noann:")

    def ann_issue(self):
        k = self.k
        k(f"s_cmp_eq_u32 s{sW_}, 0")
        k(f"v_mov_b32 v{vPOLL}, 0")
        k("s_cbranch_scc0 L_noai")
        k.uncounted(f"buffer_load_dword v{vU+6}, v{vPOLL}, {srd(SRD_D)}, 0 offen sc1")
        k("L_noai:")

    def ann_check(self):
        k = self.k
        k(f"s_cmp_eq_u32 s{sW_}, 0")
        k("s_cbranch_scc0 L_acd")
        k(f"s_mov_b32 s{sCNT}, 0")
        k("L_acl:")
        k(f"v_cmp_eq_u32 vcc, 0, v{vU+6} ; dummy")
        k(f"s_cmp_lt_u32 s{sCNT}, 0x8000")
        k("s_cbranch_scc0 L_acd")
        k("s_cbranch_vccz L_acd")
        k.uncounted(f"buffer_load_dword v{vU+6}, v{vPOLL}, {srd(SRD_D)}, 0 offen sc1")
        k(f"s_add_u32 s{sCNT}, s{sCNT}, 1")
        k("s_waitcnt vmcnt(0)")
        k("s_branch L_acl")
        k("L_acd:")

    def common_steps(self):
        k = self.k

        def post4():
            k(f"s_cmp_lt_u32 s{sW_}, 7")
            k("s_cbranch_scc0 L_nogate")
            k(f"v_mov_b32 v{vU+1}, 0")
            k(f"v_mov_b32 v{vU+2}, v{vU}")
            k(f"v_mov_b32 v{vU+3}, 0")
            k.uncounted(f"ds_write_b128 v{vGA}, {vr(vU,4)}")
            k("L_nogate:")
        for s in range(7):
            pre = post = None
            if s == 0:
                post = self.announce
            if s == 3:
                pre = self.ann_issue
            if s == 4:
                post = post4
            if s == 6:
                post = self.ann_check
            self.gemm_step(s, pre=pre, post=post)
            if s == 0:
                self.stamp()

    def gate_and_q(self, sign):
        return ([f"v_mul_f32 v{vG}, {hex(f2u(sign*LOG2E))}, v{ACA+12}"] + self.pack16(ACA, F8) +
                [f"v_exp_f32 v{vG}, v{vG}"] + self.zero_pad(F8) +
                [f"v_add_f32 v{vG}, 1.0, v{vG}"])

    def o_epilogue(self, OA, eps, tag):
        k = self.k
        if eps:
            k(f"v_add_f32 v{vT0}, {hex(f2u(1e-6))}, v{OA+12}")
            k(f"v_mul_f32 v{vT0}, v{vG}, v{vT0}")
        else:
            k(f"v_mul_f32 v{vT0}, v{vG}, v{OA+12}")
        k(f"v_rcp_f32 v{vB}, v{vT0}")
        k(f"v_mov_b32 v{vB+1}, v{vB}")
        k(f"v_permlane32_swap_b32 v{vB}, v{vB+1}")
        for i in range(8):
            k(f"v_pk_mul_f32 {vr(OA+2*i,2)}, {vr(OA+2*i,2)}, {vr(vB,2)} op_sel:[0,1] op_sel_hi:[1,1]")
        k(*self.pack16(OA, F8))
        k(*self.zero_pad(F8))
        k(f"s_lshl_b32 s{sT0}, s{sTB}, 2")
        k(f"s_add_u32 s{sT0}, s{sT0}, s{sTT}")
        k(f"s_lshl_b32 s{sT0}, s{sT0}, 16")
        k(f"s_lshr_b32 s{sT1}, s{sWGL}, 4")
        k(f"s_lshl_b32 s{sT1}, s{sT1}, 1")
        k(f"s_add_u32 s{sT1}, s{sT1}, s{sHH}")
        k(f"s_lshl_b32 s{sT1}, s{sT1}, 11")
        k(f"s_add_u32 s{sT0}, s{sT0}, s{sT1}")
        k(f"s_add_u32 s{sT0}, s{sT0}, {WS_O}")
        sc = "sc1" if self.o.get("fuse", 1) else ""
        k(f"buffer_store_dwordx4 {vr(F8,4)}, v{vL16}, {srd(SRD_WS)}, s{sT0} offen {sc}")
        k(f"buffer_store_dwordx4 {vr(F8+4,4)}, v{vL16}, {srd(SRD_WS)}, s{sT0} offen offset:1024 {sc}")

    def branch_b(self):
        k = self.k
        CD, CO = R16A, R16B
        vMT = vU + 3
        mk = [f"v_and_b32 v{vMT}, 31, v{vL}", f"v_lshrrev_b32 v{vT2}, 5, v{vL}",
              f"v_lshlrev_b32 v{vT2}, 2, v{vT2}", f"v_sub_u32 v{vMT}, v{vMT}, v{vT2}",
              f"s_mov_b32 s{sNEG}, 0xff800000"]
        for r in range(16):
            cr = (r & 3) + 8 * (r >> 2)
            mk += [f"v_subrev_u32 v{CD+r}, {cr}, v{vMT}", f"v_ashrrev_i32 v{CD+r}, 31, v{CD+r}",
                   f"v_and_b32 v{CD+r}, s{sNEG}, v{CD+r}", f"v_xor_b32 v{CO+r}, s{sNEG}, v{CD+r}"]
        vKA = vU + 4
        adr = [f"s_mul_i32 s{sT0}, s{sHH}, 24576", f"s_lshl_b32 s{sT1}, s{sTT}, 11", f"s_add_u32 s{sT0}, s{sT0}, s{sT1}",
               f"v_add_u32 v{vKA}, s{sT0}, v{vL16}"]

        def publish(acc, isv):
            g = self.pack16(acc, F8)
            if isv:
                g += [f"v_bfi_b32 v{F8+i}, v{vM28}, s{sONES}, v{F8+i}" for i in range(8)]
            else:
                g += self.zero_pad(F8)
            base = (L_VA if isv else L_KA) + 8 * 2048
            g += [f"s_lshl_b32 s{sT0}, s{sHP}, 1", f"s_add_u32 s{sT0}, s{sT0}, s{sHH}", f"s_lshl_b32 s{sT0}, s{sT0}, 6",
                  f"s_lshl_b32 s{sT1}, s{sTB}, 2", f"s_add_u32 s{sT0}, s{sT0}, s{sT1}", f"s_add_u32 s{sT0}, s{sT0}, s{sTT}",
                  f"s_lshl_b32 s{sT0}, s{sT0}, 11", f"s_add_u32 s{sT0}, s{sT0}, {WS_VB if isv else WS_KB}"]
            tail = (f"buffer_store_dwordx4 {vr(F8,4)}, v{vL16}, {srd(SRD_WS)}, s{sT0} offen sc1\n"
                    f"buffer_store_dwordx4 {vr(F8+4,4)}, v{vL16}, {srd(SRD_WS)}, s{sT0} offen offset:1024 sc1\n")
            if isv:
                tail += f"v_add_u32 v{vT2}, {base}, v{vKA}\n"
                tail += f"ds_write_b128 v{vT2}, {vr(F8,4)}\nds_write_b128 v{vT2}, {vr(F8+4,4)} offset:1024"
            else:
                tail += f"ds_write_b128 v{vKA}, {vr(F8,4)} offset:{base}\nds_write_b128 v{vKA}, {vr(F8+4,4)} offset:{base+1024}"
            return g + [tail]

        self.gemm_step(7, bg=adr)
        self.stamp()
        self.gemm_step(8, bg=publish(ACA, False))
        tokK = ("vm", k.nvm)
        per = -(-len(mk) // 5)
        KF = self.o.get("kflag", 13)
        for s in range(9, 15):
            self.gemm_step(s, bg=mk[(s - 9) * per:(s - 8) * per], extra_vm=tokK if s == KF else None,
                           post=(lambda: self.set_flag(1, "bk")) if s == KF else None)
        self.stamp()
        self.gemm_step(15, bg=publish(ACB, True))
        tokV = ("vm", k.nvm)
        for s in range(16, 21):
            self.gemm_step(s, extra_vm=tokV if s == 20 else None, post=(lambda: self.set_flag(2, "bv")) if s == 20 else None)
        self.gemm_step(21)
        self.stamp()
        QF = 112
        g = self.gate_and_q(+1.0)
        k(*g)
        for i in range(8):
            k(f"v_mov_b32 v{QF+i}, v{F8+i}")

        def setup():
            k(f"v_sub_u32 v{vPOLL}, s{sWGL}, v{vL}")
            k(f"v_add_u32 v{vPOLL}, -1, v{vPOLL}")
            k(f"v_lshlrev_b32 v{vPOLL}, 7, v{vPOLL}")
            k(f"s_min_u32 s{sT0}, s{sTB}, 2")
            k(f"s_bfm_b64 exec, s{sT0}, 0")
        self.poll("bn", 2, setup)
        k("s_barrier")
        self.stamp()
        k(f"s_lshl_b32 s{sT0}, s{sTB}, 2")
        k(f"s_add_u32 s{sT0}, s{sT0}, s{sW_}")
        k(f"s_cmp_ge_u32 s{sT0}, 8")
        k(f"s_cselect_b32 s{SRD_Z+2}, {WS_BYTES}, 0")
        k(f"s_mov_b32 s{SRD_Z}, s{SRD_WS}")
        k(f"s_mov_b32 s{SRD_Z+1}, s{SRD_WS+1}")
        k(f"s_lshl_b32 s{sT1}, s{sHP}, 7")
        k(f"s_add_u32 s{sT0}, s{sT0}, s{sT1}")
        k(f"s_lshl_b32 s{sT0}, s{sT0}, 11")
        ST = 128
        toks = []
        for mi in range(2):
            for hh in range(2):
                off = (WS_VB if mi else WS_KB) + hh * 64 * 2048 - 8 * 2048
                k(f"s_add_u32 s{sT1}, s{sT0}, {off}")
                if self.o.get("dma_sc1"):
                    for s in range(2):
                        k(f"s_add_u32 m0, s{sW2K}, {mi*L_VA + hh*24576}")
                        toks.append(k(f"buffer_load_dwordx4 v{vL16}, {srd(SRD_Z)}, s{sT1} offen offset:{s*1024} sc1 lds"))
                else:
                    for s in range(2):
                        d = ST + (mi * 4 + hh * 2 + s) * 4
                        toks.append(k(f"buffer_load_dwordx4 {vr(d,4)}, v{vL16}, {srd(SRD_Z)}, s{sT1} offen offset:{s*1024} sc1"))
        if not self.o.get("dma_sc1"):
            k(f"v_add_u32 v{vT0}, s{sW2K}, v{vL16}")
            k(f"v_add_u32 v{vT1}, {L_VA}, v{vT0}")
            for mi in range(2):
                for hh in range(2):
                    for s in range(2):
                        n = mi * 4 + hh * 2 + s
                        k.wait(vm=toks[n])
                        k(f"ds_write_b128 v{vT1 if mi else vT0}, {vr(ST+n*4,4)} offset:{hh*24576 + s*1024}")
            k("s_waitcnt lgkmcnt(0)")
        else:
            k("s_waitcnt vmcnt(0)")
        k("s_barrier")
        self.stamp()
        S = [16, 32]; P = [48, 56]; KFb = [64, 72]; VFb = [80, 88]; OA = 96
        vVA = vU + 5
        k(f"v_add_u32 v{vVA}, {L_VA}, v{vKA}")
        k(f"v_mov_b32 v{vC}, {hex(f2u(CSC))}")
        order = list(range(8, -1, -1))

        def rdK(n):
            i = order[n]
            k(f"ds_read_b128 {vr(KFb[n%2],4)}, v{vKA} offset:{i*2048}")
            return k(f"ds_read_b128 {vr(KFb[n%2]+4,4)}, v{vKA} offset:{i*2048+1024}")

        def rdV(n):
            i = order[n]
            k(f"ds_read_b128 {vr(VFb[n%2],4)}, v{vVA} offset:{i*2048}")
            return k(f"ds_read_b128 {vr(VFb[n%2]+4,4)}, v{vVA} offset:{i*2048+1024}")

        def mS(n):
            i = order[n]
            c = vr(CD, 16) if i == 8 else vr(CO, 16) if i == 0 else "0"
            return [f"v_mfma_f32_32x32x16_bf16 {vr(S[n%2],16)}, {vr(KFb[n%2],4)}, {vr(QF,4)}, {c}",
                    f"v_mfma_f32_32x32x16_bf16 {vr(S[n%2],16)}, {vr(KFb[n%2]+4,4)}, {vr(QF+4,4)}, {vr(S[n%2],16)}"]

        def mPV(n):
            c = "0" if n == 0 else vr(OA, 16)
            return [f"v_mfma_f32_32x32x16_bf16 {vr(OA,16)}, {vr(VFb[n%2],4)}, {vr(P[n%2],4)}, {c}",
                    f"v_mfma_f32_32x32x16_bf16 {vr(OA,16)}, {vr(VFb[n%2]+4,4)}, {vr(P[n%2]+4,4)}, {vr(OA,16)}"]

        def soft(n):
            s = S[n % 2]; p = P[n % 2]
            g = []
            for i in range(8):
                g.append(f"v_pk_mul_f32 {vr(s+2*i,2)}, {vr(s+2*i,2)}, {vr(vC,2)} op_sel_hi:[1,0]")
            e = []
            for i in range(8):
                e.append(f"v_exp_f32 v{s+2*i}, v{s+2*i}\nv_exp_f32 v{s+2*i+1}, v{s+2*i+1}")
            c = [f"v_cvt_pk_bf16_f32 v{p+i}, v{s+2*i}, v{s+2*i+1}" for i in range(8)]
            out = [g[0], g[1]]
            for i in range(8):
                if i + 2 < 8:
                    out.append(g[i + 2])
                out.append(e[i])
                if i >= 1:
                    out.append(c[i - 1])
            out.append(c[7])
            return out

        tK = {0: rdK(0)}
        tK[1] = rdK(1)
        k.wait(lg=tK[0])
        k(*mS(0))
        tV = {}
        for n in range(9):
            mf = []
            if n + 1 < 9:
                k.wait(lg=tK[n + 1])
                mf += mS(n + 1)
            elif n >= 1:
                k.wait(lg=tV[n - 1])
            if n >= 1:
                mf += mPV(n - 1)
            sf = soft(n)
            per = -(-len(sf) // max(len(mf), 1))
            for i, m in enumerate(mf):
                k(m)
                if i == len(mf) - 1:
                    tV[n] = rdV(n)
                    if n + 2 < 9:
                        tK[n + 2] = rdK(n + 2)
                for g in sf[i * per:(i + 1) * per]:
                    k(g)
        k.wait(lg=tV[8])
        k(*mPV(8))
        self.stamp()
        k(f"v_mov_b32 v{vT0}, {hex(f2u(2.0**-60))}")
        k(f"v_mov_b32 v{vT1}, {hex(f2u(2.0**60))}")
        k(f"v_cmp_le_f32 vcc, v{vT0}, v{OA+12}")
        k(f"v_cmp_ge_f32 s[{sT0}:{sT0+1}], v{vT1}, v{OA+12}")
        k(f"s_and_b32 s{sT0}, s{sT0+1}, vcc_hi")
        if self.o.get("force_slow"):
            k(f"s_mov_b32 s{sT0}, 0")
        k(f"s_cmp_eq_u32 s{sT0}, -1")
        k("s_cbranch_scc0 L_slow")
        k("L_slow_done:")
        self.o_epilogue(OA, False, "b")
        self.slow = dict(S=S[0], P=P[0], KF=KFb[0], VF=VFb[0], OA=OA, QF=QF, CD=CD, CO=CO, vKA=vKA, vVA=vVA)

    def slow_path(self):
        k = self.k
        d = self.slow
        S, P, KF, VF, OA, QF, CD, CO = (d[x] for x in ("S", "P", "KF", "VF", "OA", "QF", "CD", "CO"))
        vKA, vVA = d["vKA"], d["vVA"]
        vM = vT2; vA = vT0; vA2 = vT1
        k("L_slow:")
        k(f"s_lshl_b32 s{sT0}, s{sTB}, 2")
        k(f"s_add_u32 s{sT0}, s{sT0}, s{sTT}")
        k(f"s_min_u32 s{sT0}, s{sT0}, 8")
        k(f"s_sub_u32 s{sT1}, 8, s{sT0}")
        k(f"v_mov_b32 v{vM}, s{sNEG}")

        def scores(tag):
            k(f"s_lshl_b32 s{sT3}, s{sT2}, 11")
            k(f"v_add_u32 v{vA}, s{sT3}, v{vKA}")
            k(f"ds_read_b128 {vr(KF,4)}, v{vA}")
            k(f"ds_read_b128 {vr(KF+4,4)}, v{vA} offset:1024")
            k("s_waitcnt lgkmcnt(0)")
            k(f"v_mfma_f32_32x32x16_bf16 {vr(S,16)}, {vr(KF,4)}, {vr(QF,4)}, 0")
            k(f"v_mfma_f32_32x32x16_bf16 {vr(S,16)}, {vr(KF+4,4)}, {vr(QF+4,4)}, {vr(S,16)}")
            k("s_nop 15")
            k(f"s_cmp_eq_u32 s{sT2}, 8")
            k(f"s_cbranch_scc0 L_sl_a{tag}")
            for r in range(16):
                k(f"v_add_f32 v{S+r}, v{CD+r}, v{S+r}")
            k(f"L_sl_a{tag}:")
            k(f"s_cmp_eq_u32 s{sT2}, 0")
            k(f"s_cbranch_scc0 L_sl_b{tag}")
            for r in range(16):
                k(f"v_add_f32 v{S+r}, v{CO+r}, v{S+r}")
            k(f"L_sl_b{tag}:")
        k(f"s_mov_b32 s{sT2}, s{sT1}")
        k("L_sl_1:")
        scores("1")
        for r in range(8):
            k(f"v_max3_f32 v{vM}, v{vM}, v{S+2*r}, v{S+2*r+1}")
        k(f"s_add_u32 s{sT2}, s{sT2}, 1")
        k(f"s_cmp_le_u32 s{sT2}, 8")
        k("s_cbranch_scc1 L_sl_1")
        k(f"v_mov_b32 v{vA}, v{vM}")
        k(f"v_permlane32_swap_b32 v{vM}, v{vA}")
        k(f"v_max_f32 v{vM}, v{vM}, v{vA}")
        for r in range(16):
            k(f"v_mov_b32 v{OA+r}, 0")
        k(f"s_mov_b32 s{sT2}, s{sT1}")
        k("L_sl_2:")
        scores("2")
        k(f"v_add_u32 v{vA2}, s{sT3}, v{vVA}")
        k(f"ds_read_b128 {vr(VF,4)}, v{vA2}")
        k(f"ds_read_b128 {vr(VF+4,4)}, v{vA2} offset:1024")
        for r in range(16):
            k(f"v_sub_f32 v{S+r}, v{S+r}, v{vM}")
        for r in range(16):
            k(f"v_mul_f32 v{S+r}, v{vC}, v{S+r}")
        for r in range(16):
            k(f"v_exp_f32 v{S+r}, v{S+r}")
        k(*self.pack16(S, P))
        k("s_waitcnt lgkmcnt(0)")
        k(f"v_mfma_f32_32x32x16_bf16 {vr(OA,16)}, {vr(VF,4)}, {vr(P,4)}, {vr(OA,16)}")
        k(f"v_mfma_f32_32x32x16_bf16 {vr(OA,16)}, {vr(VF+4,4)}, {vr(P+4,4)}, {vr(OA,16)}")
        k(f"s_add_u32 s{sT2}, s{sT2}, 1")
        k(f"s_cmp_le_u32 s{sT2}, 8")
        k("s_cbranch_scc1 L_sl_2")
        k("s_nop 15")
        k("s_branch L_slow_done")

    def featmap(self, P, E, outp, outn):
        g = []
        t = vU
        if self.o.get("round_p", 1):
            for i in range(8):
                g += [f"v_cvt_pk_bf16_f32 v{t+(i%2)}, v{P+2*i}, v{P+2*i+1}",
                      f"v_lshlrev_b32 v{P+2*i}, 16, v{t+(i%2)}",
                      f"v_and_b32 v{P+2*i+1}, 0xffff0000, v{t+(i%2)}"]
        for i in range(4):
            g.append(f"v_bfi_b32 v{P+12+i}, v{vLO}, v{P+12+i}, v{P+8}")
        mx, mn = t, t + 1
        g += [f"v_max3_f32 v{mx}, v{P}, v{P+1}, v{P+2}", f"v_min3_f32 v{mn}, v{P}, v{P+1}, v{P+2}"]
        for i in range(6):
            g += [f"v_max3_f32 v{mx}, v{mx}, v{P+3+2*i}, v{P+4+2*i}", f"v_min3_f32 v{mn}, v{mn}, v{P+3+2*i}, v{P+4+2*i}"]
        g += [f"v_max_f32 v{mx}, v{mx}, v{P+15}", f"v_min_f32 v{mn}, v{mn}, v{P+15}",
              f"v_mov_b32 v{t+2}, v{mx}", f"v_mov_b32 v{t+3}, v{mn}",
              f"v_permlane32_swap_b32 v{mx}, v{t+2}", f"v_permlane32_swap_b32 v{mn}, v{t+3}",
              f"v_max_f32 v{mx}, v{mx}, v{t+2}", f"v_min_f32 v{mn}, v{mn}, v{t+3}",
              f"v_mul_f32 v{vB}, v{vC+1}, v{mx}", f"v_mul_f32 v{vB+1}, v{vC}, v{mn}"]
        for i in range(8):
            g.append(f"v_pk_fma_f32 {vr(E+2*i,2)}, {vr(P+2*i,2)}, {vr(vC,2)}, {vr(vB,2)} op_sel_hi:[1,0,0]")
            g.append(f"v_pk_fma_f32 {vr(P+2*i,2)}, {vr(P+2*i,2)}, {vr(vC,2)}, {vr(vB,2)} op_sel:[0,1,1] op_sel_hi:[1,1,1]")
        for i in range(16):
            g.append(f"v_exp_f32 v{E+i}, v{E+i}\nv_exp_f32 v{P+i}, v{P+i}")
        for i in range(4):
            g += [f"v_and_b32 v{E+12+i}, v{vLO}, v{E+12+i}", f"v_and_b32 v{P+12+i}, v{vLO}, v{P+12+i}"]
        sp, sn = t, t + 2
        g += [f"v_pk_add_f32 {vr(sp,2)}, {vr(E,2)}, {vr(E+2,2)}", f"v_pk_add_f32 {vr(sn,2)}, {vr(P,2)}, {vr(P+2,2)}"]
        for i in range(2, 8):
            g += [f"v_pk_add_f32 {vr(sp,2)}, {vr(sp,2)}, {vr(E+2*i,2)}", f"v_pk_add_f32 {vr(sn,2)}, {vr(sn,2)}, {vr(P+2*i,2)}"]
        g += [f"v_add_f32 v{sp}, v{sp}, v{sp+1}", f"v_add_f32 v{sn}, v{sn}, v{sn+1}",
              f"v_permlane32_swap_b32 v{sp}, v{sn}",
              f"v_add_f32 v{sp}, v{sp}, v{sn}",
              f"v_rcp_f32 v{vB}, v{sp}",
              f"v_mov_b32 v{vB+1}, v{vB}",
              f"v_permlane32_swap_b32 v{vB}, v{vB+1}"]
        for i in range(8):
            g.append(f"v_pk_mul_f32 {vr(E+2*i,2)}, {vr(E+2*i,2)}, {vr(vB,2)} op_sel_hi:[1,0]")
            g.append(f"v_pk_mul_f32 {vr(P+2*i,2)}, {vr(P+2*i,2)}, {vr(vB,2)} op_sel:[0,1] op_sel_hi:[1,1]")
        g += self.pack16(E, outp)
        g += self.pack16(P, outn)
        return g

    def branch_a(self):
        k = self.k
        P, E = R16A, R16B
        vPA = vU + 4
        pre = [f"v_and_b32 v{vT0}, 3, v{vL}", f"v_bfe_u32 v{vT1}, v{vL}, 4, 1", f"v_lshl_add_u32 v{vT0}, v{vT1}, 2, v{vT0}",
               f"v_bfe_u32 v{vT1}, v{vL}, 2, 2", f"v_lshrrev_b32 v{vT2}, 5, v{vL}", f"v_lshl_add_u32 v{vT1}, v{vT2}, 2, v{vT1}",
               f"v_mul_u32_u24 v{vPA}, 56, v{vT1}", f"v_lshl_add_u32 v{vPA}, v{vT0}, 3, v{vPA}",
               f"s_mul_i32 s{sT0}, s{sHH}, 1568", f"s_add_u32 s{sT0}, s{sT0}, {L_SP}", f"v_add_u32 v{vPA}, s{sT0}, v{vPA}"]
        for s in range(2):
            for e in range(2):
                pre.append(f"ds_read_b64_tr_b16 {vr(WPH+4*s+2*e,2)}, v{vPA} offset:{(16*s+8*e)*56}")
        pre += [f"v_mov_b32 v{vC}, {hex(f2u(LOG2E))}", f"v_mov_b32 v{vC+1}, {hex(f2u(-LOG2E))}"]
        self.gemm_step(7, bg=pre)
        self.stamp()

        def pmfma():
            return [f"v_mfma_f32_32x32x16_bf16 {vr(P,16)}, {vr(WPH,4)}, {vr(F8,4)}, 0\n"
                    f"v_mfma_f32_32x32x16_bf16 {vr(P,16)}, {vr(WPH+4,4)}, {vr(F8+4,4)}, {vr(P,16)}"]
        self.gemm_step(8, bg=self.pack16(ACA, F8) + self.zero_pad(F8) + pmfma())
        fm = self.featmap(P, E, F8, E)
        vPW = vU + 4
        wr = [f"v_and_b32 v{vT0}, 5, v{vL}", f"v_bfe_u32 v{vT1}, v{vL}, 1, 1", f"v_lshl_or_b32 v{vT0}, v{vT1}, 3, v{vT0}",
              f"v_bfe_u32 v{vT1}, v{vL}, 3, 1", f"v_lshl_or_b32 v{vT0}, v{vT1}, 1, v{vT0}",
              f"v_lshrrev_b32 v{vT1}, 5, v{vL}", f"v_xor_b32 v{vT0}, v{vT1}, v{vT0}", f"v_lshlrev_b32 v{vT0}, 3, v{vT0}",
              f"v_and_b32 v{vT1}, 31, v{vL}", f"v_lshl_add_u32 v{vT0}, v{vT1}, 7, v{vT0}",
              f"s_lshl_b32 s{sT0}, s{sW_}, 12", f"v_add_u32 v{vPW}, s{sT0}, v{vT0}"]
        for ft in range(2):
            for m in range(4):
                src = (F8 if ft == 0 else E) + 2 * m
                q = ft * 8 + 2 * m
                if q:
                    wr.append(f"v_xor_b32 v{vT0}, {q*8}, v{vPW}\nds_write_b64 v{vT0}, {vr(src,2)} offset:{L_PHI}")
                else:
                    wr.append(f"ds_write_b64 v{vPW}, {vr(src,2)} offset:{L_PHI}")
        allbg = fm + wr
        per = -(-len(allbg) // 6)
        for s in range(9, 15):
            self.gemm_step(s, bg=allbg[(s - 9) * per:(s - 8) * per])
        self.stamp()
        g = self.pack16(ACB, F8) + [f"v_bfi_b32 v{F8+i}, v{vM28}, s{sONES}, v{F8+i}" for i in range(8)]
        g += [f"v_add_u32 v{vT0}, s{sW2K}, v{vL16}",
              f"ds_write_b128 v{vT0}, {vr(F8,4)} offset:{L_VF}\nds_write_b128 v{vT0}, {vr(F8+4,4)} offset:{L_VF+1024}"]
        self.gemm_step(15, bg=g)

        def kvpart():
            k(f"s_cmp_lt_u32 s{sW_}, 4")
            k("s_cbranch_scc0 L_nokv")
            st = k.state()
            a1, a2, a3 = vU + 4, vU + 5, vU + 3
            k(f"v_and_b32 v{vT0}, 3, v{vL}")
            k(f"v_bfe_u32 v{vT1}, v{vL}, 4, 1")
            k(f"v_lshl_add_u32 v{vT0}, v{vT1}, 2, v{vT0}")
            k(f"s_and_b32 s{sT0}, s{sW_}, 1")
            k(f"s_lshl_b32 s{sT0}, s{sT0}, 3")
            k(f"v_add_u32 v{vT0}, s{sT0}, v{vT0}")
            k(f"v_bfe_u32 v{vT1}, v{vL}, 2, 1")
            k(f"v_xor_b32 v{vT0}, v{vT1}, v{vT0}")
            k(f"v_and_b32 v{vT1}, 8, v{vL}")
            k(f"v_xor_b32 v{vT0}, v{vT1}, v{vT0}")
            k(f"v_lshrrev_b32 v{vT2}, 5, v{vL}")
            k(f"v_lshlrev_b32 v{vT2}, 2, v{vT2}")
            k(f"v_xor_b32 v{vT0}, v{vT2}, v{vT0}")
            k(f"v_bfe_u32 v{vT1}, v{vL}, 2, 2")
            k(f"v_add_u32 v{vT1}, v{vT1}, v{vT2}")
            k(f"v_lshlrev_b32 v{vT0}, 3, v{vT0}")
            k(f"v_lshl_add_u32 v{vT0}, v{vT1}, 7, v{vT0}")
            k(f"s_lshr_b32 s{sT0}, s{sW_}, 1")
            k(f"s_lshl_b32 s{sT1}, s{sT0}, 14")
            k(f"v_add_u32 v{a1}, s{sT1}, v{vT0}")
            k(f"v_xor_b32 v{a2}, 16, v{a1}")
            k(f"s_lshl_b32 s{sT1}, s{sT0}, 13")
            k(f"v_add_u32 v{a3}, s{sT1}, v{vL16}")
            toks = []

            def rd(n):
                b = (n % 4) * 4
                k(f"ds_read_b64_tr_b16 {vr(P+b,2)}, v{a1} offset:{L_PHI + n*2048}")
                k(f"ds_read_b64_tr_b16 {vr(P+b+2,2)}, v{a2} offset:{L_PHI + n*2048 + 1024}")
                toks.append(k(f"ds_read_b128 {vr(E+b,4)}, v{a3} offset:{L_VF + n*1024}"))
            for n in range(4):
                rd(n)
            for n in range(8):
                k.wait(lg=toks[n])
                b = (n % 4) * 4
                k(f"v_mfma_f32_32x32x16_bf16 {vr(ACB,16)}, {vr(P+b,4)}, {vr(E+b,4)}, {'0' if n == 0 else vr(ACB,16)}")
                if n + 4 < 8:
                    rd(n + 4)
            k(f"s_lshl_b32 s{sT1}, s{sHP}, 1")
            k(f"s_add_u32 s{sT0}, s{sT0}, s{sT1}")
            k(f"s_lshl_b32 s{sT0}, s{sT0}, 4")
            k(f"s_add_u32 s{sT0}, s{sT0}, s{sTB}")
            k(f"s_lshl_b32 s{sT0}, s{sT0}, 1")
            k(f"s_and_b32 s{sT1}, s{sW_}, 1")
            k(f"s_add_u32 s{sT0}, s{sT0}, s{sT1}")
            k(f"s_lshl_b32 s{sT0}, s{sT0}, 11")
            k(f"s_add_u32 s{sT0}, s{sT0}, {WS_PART}")
            k(*self.pack16(ACB, F8))
            k.uncounted(f"buffer_store_dwordx4 {vr(F8,4)}, v{vL16}, {srd(SRD_WS)}, s{sT0} offen sc1")
            k.uncounted(f"buffer_store_dwordx4 {vr(F8+4,4)}, v{vL16}, {srd(SRD_WS)}, s{sT0} offen offset:1024 sc1")
            k("L_nokv:")
            k.restore(st)
        self.gemm_step(16, post=kvpart)
        for s in range(17, 21):
            self.gemm_step(s)
        self.gemm_step(21)
        self.stamp()
        k("s_waitcnt vmcnt(0)")
        k("s_barrier")
        self.set_flag(1, "ak")
        k(*self.gate_and_q(-1.0))
        k(*pmfma())
        PHP, PHN = 16, 24
        k(*self.featmap(P, E, PHP, PHN))
        SEL = 32
        k(f"v_and_b32 v{vT0}, 31, v{vL}")
        k(f"v_lshrrev_b32 v{vT1}, 5, v{vL}")
        k(f"v_lshlrev_b32 v{vT1}, 2, v{vT1}")
        k(f"v_sub_u32 v{vT0}, v{vT0}, v{vT1}")
        k(f"v_mov_b32 v{vT1}, 0x3f80")
        k(f"v_mov_b32 v{vT2}, 0x3f800000")
        for p in range(4):
            c0 = (2 * p & 3) + 8 * (2 * p >> 2)
            k(f"v_cmp_eq_u32 vcc, {c0}, v{vT0}")
            k(f"v_cndmask_b32 v{SEL+p}, 0, v{vT1}, vcc")
            k(f"v_cmp_eq_u32 vcc, {c0+1}, v{vT0}")
            k(f"v_cndmask_b32 v{SEL+p}, v{SEL+p}, v{vT2}, vcc")
        self.stamp()

        def setup():
            k(f"s_and_b32 s{sT0}, s{sWGL}, 0xf0")
            k(f"v_add_u32 v{vPOLL}, s{sT0}, v{vL}")
            k(f"v_lshlrev_b32 v{vPOLL}, 7, v{vPOLL}")
            k("s_mov_b64 exec, 0xffff")
        self.poll("ap", 1, setup)
        k("s_barrier")
        self.stamp()
        ST = 48
        k(f"s_lshl_b32 s{sT0}, s{sHP}, 1")
        k(f"s_add_u32 s{sT0}, s{sT0}, s{sHH}")
        k(f"s_lshl_b32 s{sT0}, s{sT0}, 16")
        k(f"s_lshl_b32 s{sT1}, s{sTT}, 10")
        k(f"s_add_u32 s{sT0}, s{sT0}, s{sT1}")
        k(f"s_add_u32 s{sT0}, s{sT0}, {WS_PART}")
        toks = []
        for t in range(16):
            toks.append(k(f"buffer_load_dwordx4 {vr(ST+4*t,4)}, v{vL16}, {srd(SRD_WS)}, s{sT0} offen sc1"))
            if t < 15:
                k(f"s_add_u32 s{sT0}, s{sT0}, 4096")
        for t in range(16):
            k.wait(vm=toks[t])
            k(f"v_mfma_f32_32x32x16_bf16 {vr(ACB,16)}, {vr(SEL,4)}, {vr(ST+4*t,4)}, {'0' if t == 0 else vr(ACB,16)}")
        k(f"v_add_u32 v{vT0}, s{sW1K}, v{vL16}")
        k(f"v_add_u32 v{vT0}, {L_KVX}, v{vT0}")
        k(f"s_lshl_b32 s{sT0}, s{sHH}, 12")
        k(f"s_add_u32 s{sT0}, s{sT0}, {L_KVX}")
        k(f"v_add_u32 v{vT1}, s{sT0}, v{vL16}")
        for i in range(4):
            k(f"v_cvt_pk_bf16_f32 v{F8+i}, v{ACB+2*i}, v{ACB+2*i+1}")
        k(f"ds_write_b128 v{vT0}, {vr(F8,4)}")
        k("s_waitcnt lgkmcnt(0)")
        k("s_barrier")
        toks = [k(f"ds_read_b128 {vr(ST+4*n,4)}, v{vT1} offset:{n*1024}") for n in range(4)]
        for n in range(4):
            k.wait(lg=toks[n])
            k(f"v_mfma_f32_32x32x16_bf16 {vr(ACA,16)}, {vr(ST+4*n,4)}, {vr(PHP+4*n,4)}, {'0' if n == 0 else vr(ACA,16)}")
        self.stamp()
        self.o_epilogue(ACA, True, "a")

    def final_setup_roles(self):
        k = self.k
        k(f"s_lshr_b32 s{sT0}, s2, 3")
        k(f"s_cmp_ge_u32 s{sT0}, 28")
        k("s_cbranch_scc1 L_end")
        k(f"s_mul_i32 s{sT1}, s{sT0}, 37")
        k(f"s_lshr_b32 s{sT1}, s{sT1}, 8")
        k(f"s_mul_i32 s{sT2}, s{sT1}, 7")
        k(f"s_sub_u32 s{sCB}, s{sT0}, s{sT2}")
        k(f"s_and_b32 s{sRB}, s2, 7")
        k(f"s_lshl_b32 s{sRB}, s{sRB}, 2")
        k(f"s_add_u32 s{sRB}, s{sRB}, s{sT1}")

    def final_stage(self, fused):
        k = self.k
        vD = 16
        k(f"v_lshrrev_b32 v{vT0}, 3, v{vL}")
        k(f"v_and_b32 v{vT1}, 7, v{vL}")
        k(f"v_bfe_u32 v{vT2}, v{vL}, 4, 2")
        k(f"v_lshlrev_b32 v{vT2}, 1, v{vT2}")
        k(f"v_xor_b32 v{vT1}, v{vT2}, v{vT1}")
        k(f"s_lshl_b32 s{sT0}, s{sW_}, 3")
        k(f"v_add_u32 v{vD}, s{sT0}, v{vT0}")
        k(f"v_mul_u32_u24 v{vD}, 896, v{vD}")
        k(f"v_lshl_add_u32 v{vD}, v{vT1}, 4, v{vD}")
        k(f"s_lshl_b32 s{sT0}, s{sCB}, 7")
        k(f"v_add_u32 v{vD}, s{sT0}, v{vD}")
        for half in range(2):
            for i in range(7):
                k(f"s_mov_b32 s{sT0}, {i*64*896}")
                k(f"s_add_u32 m0, s{sW1K}, {(L_W2B if half else L_W2A) + i*8192}")
                tokw = k(f"buffer_load_dwordx4 v{vD}, {srd(SRD_B if half else SRD_A)}, s{sT0} offen lds")
        k(f"v_lshlrev_b32 v{vT0}, 3, v{vL}")
        k(f"v_add_u32 v{vT1}, {L_W2A + 57344}, v{vT0}")
        k(f"v_mov_b32 v18, 0")
        k(f"v_mov_b32 v19, 0")
        k(f"ds_write_b64 v{vT0}, v[18:19] offset:{L_W2B + 57344}")
        k(f"ds_write_b64 v{vT1}, v[18:19]")
        AA, AB = 20, 24
        k(f"v_bfe_u32 v{vT0}, v{vL}, 2, 2")
        k(f"v_bfe_u32 v{vT1}, v{vL}, 4, 1")
        k(f"v_lshl_add_u32 v{vT0}, v{vT1}, 2, v{vT0}")
        k(f"v_lshrrev_b32 v{vT1}, 1, v{vT0}")
        k(f"s_lshl_b32 s{sT0}, s{sHH}, 1")
        k(f"v_xor_b32 v{vT1}, s{sT0}, v{vT1}")
        k(f"v_lshrrev_b32 v{vT2}, 5, v{vL}")
        k(f"v_lshl_add_u32 v{vT0}, v{vT2}, 4, v{vT0}")
        k(f"v_lshlrev_b32 v{vT0}, 7, v{vT0}")
        k(f"v_lshl_add_u32 v{vT0}, v{vT1}, 5, v{vT0}")
        k(f"v_and_b32 v{vT1}, 3, v{vL}")
        k(f"v_lshl_add_u32 v{vT0}, v{vT1}, 3, v{vT0}")
        k(f"s_mul_i32 s{sT0}, s{sHH}, {8*3584}")
        k(f"v_add_u32 v{AB}, s{sT0}, v{vT0}")
        for j in range(1, 4):
            k(f"v_xor_b32 v{AB+j}, {32*j}, v{AB}")
        for j in range(4):
            k(f"v_add_u32 v{AA+j}, {L_W2A}, v{AB+j}")
        vO = 28
        k(f"v_and_b32 v{vT0}, 15, v{vL}")
        k(f"v_lshrrev_b32 v{vT1}, 4, v{vL}")
        k(f"v_lshlrev_b32 v{vT0}, 4, v{vT0}")
        k(f"v_lshl_add_u32 v{vO}, v{vT1}, 9, v{vT0}")
        k(f"s_lshl_b32 s{sT0}, s{sRB}, 1")
        k(f"s_lshr_b32 s{sT1}, s{sTT}, 1")
        k(f"s_add_u32 s{sT0}, s{sT0}, s{sT1}")
        k(f"s_lshl_b32 s{sT0}, s{sT0}, 16")
        k(f"s_and_b32 s{sT1}, s{sTT}, 1")
        k(f"s_lshl_b32 s{sT1}, s{sT1}, 8")
        k(f"s_add_u32 s{sT0}, s{sT0}, s{sT1}")
        k(f"s_lshl_b32 s{sT1}, s{sHH}, 14")
        k(f"s_add_u32 s{sT0}, s{sT0}, s{sT1}")
        k(f"s_add_u32 s{sT3}, s{sT0}, {WS_O}")
        if fused:
            def setup():
                k(f"s_lshr_b32 s{sT0}, s{sRB}, 1")
                k(f"v_lshl_add_u32 v{vPOLL}, v{vL}, 4, s{sT0}")
                k(f"v_lshlrev_b32 v{vPOLL}, 7, v{vPOLL}")
                k("s_mov_b64 exec, 0xffff")
            self.poll("fo", 3, setup)
            k.wait(vm=tokw, lg=0)
            k("s_barrier")
        self.stamp()
        OF = 32
        sc = "sc1" if fused else ""
        toks = []
        for half in range(2):
            for i in range(8):
                if i % 2 == 0:
                    k(f"s_add_u32 s{sT0}, s{sT3}, {half*32768 + i*2048}")
                toks.append(k(f"buffer_load_dwordx4 {vr(OF+(half*8+i)*4,4)}, v{vO}, {srd(SRD_WS)}, s{sT0} offen offset:{(i%2)*2048} {sc}"))
        if not fused:
            k.wait(vm=tokw, lg=0)
            k("s_barrier")
        ACC = 96; WB = [112, 128]
        tw = {}

        def rdW(n):
            half, i = divmod(n, 8)
            t = None
            for jj in range(4):
                a = (AB if half else AA) + (jj ^ (2 * (i & 1)))
                d = WB[n % 2] + 4 * jj
                k(f"ds_read_b64_tr_b16 {vr(d,2)}, v{a} offset:{i*3584}")
                t = k(f"ds_read_b64_tr_b16 {vr(d+2,2)}, v{a} offset:{i*3584+1024}")
            tw[n] = t
        rdW(0)
        for n in range(16):
            if n + 1 < 16:
                rdW(n + 1)
            k.wait(vm=toks[n], lg=tw[n])
            for jj in range(4):
                k(f"v_mfma_f32_16x16x32_bf16 {vr(ACC+4*jj,4)}, {vr(WB[n%2]+4*jj,4)}, {vr(OF+4*n,4)}, {'0' if n == 0 else vr(ACC+4*jj,4)}")
        self.stamp()
        k(f"v_add_u32 v{vT0}, s{sW2K}, v{vL16}")
        k(f"v_add_u32 v{vT0}, {L_EX}, v{vT0}")
        k(f"v_xor_b32 v{vT1}, 8192, v{vT0}")
        k(f"v_and_b32 v{vT2}, 15, v{vL}")
        k(f"s_lshl_b32 s{sT0}, s{sRB}, 6")
        k(f"s_lshl_b32 s{sT1}, s{sTT}, 4")
        k(f"s_add_u32 s{sT0}, s{sT0}, s{sT1}")
        k(f"v_add_u32 v{vT2}, s{sT0}, v{vT2}")
        k(f"v_mul_u32_u24 v{vT2}, 896, v{vT2}")
        k(f"v_bfe_u32 v{vD}, v{vL}, 4, 1")
        k(f"v_lshl_add_u32 v{vT2}, v{vD}, 5, v{vT2}")
        k(f"v_lshrrev_b32 v{vD}, 5, v{vL}")
        k(f"v_lshl_add_u32 v{vT2}, v{vD}, 4, v{vT2}")
        k(f"s_lshl_b32 s{sT0}, s{sCB}, 7")
        k(f"s_lshl_b32 s{sT1}, s{sHH}, 6")
        k(f"s_add_u32 s{sT0}, s{sT0}, s{sT1}")
        k(f"ds_write_b128 v{vT0}, {vr(ACC+8,4)}")
        k(f"ds_write_b128 v{vT0}, {vr(ACC+12,4)} offset:1024")
        k("s_waitcnt lgkmcnt(0)")
        k("s_barrier")
        k(f"ds_read_b128 {vr(ACC+8,4)}, v{vT1}")
        k(f"ds_read_b128 {vr(ACC+12,4)}, v{vT1} offset:1024")
        k("s_waitcnt lgkmcnt(0)")
        for i in range(4):
            k(f"v_pk_add_f32 {vr(ACC+2*i,2)}, {vr(ACC+2*i,2)}, {vr(ACC+8+2*i,2)}")
        for i in range(4):
            k(f"v_cvt_pk_bf16_f32 v{ACC+8+i}, v{ACC+2*i}, v{ACC+2*i+1}")
        k(f"v_permlane16_swap_b32 v{ACC+8}, v{ACC+10}")
        k(f"v_permlane16_swap_b32 v{ACC+9}, v{ACC+11}")
        k(f"buffer_store_dwordx4 {vr(ACC+8,4)}, v{vT2}, {srd(SRD_O)}, s{sT0} offen")

    def write_stamps(self):
        if not self.o.get("stamps"):
            return
        k = self.k
        k("s_waitcnt vmcnt(0)")
        self.stamp()
        k("s_waitcnt lgkmcnt(0)")
        k(f"s_lshl_b32 s{sT0}, s2, 3")
        k(f"s_add_u32 s{sT0}, s{sT0}, s{sW_}")
        k(f"s_lshl_b32 s{sT0}, s{sT0}, 6")
        k(f"s_add_u32 s{sT0}, s{sT0}, {WS_STAMP}")
        k("s_mov_b64 exec, 1")
        k("v_mov_b32 v1, 0")
        for n in range(self.nstamp):
            k(f"s_sub_u32 s{sT1}, s{sST+2*n}, s98")
            k(f"v_mov_b32 v2, s{sT1}")
            k(f"buffer_store_dword v2, v1, {srd(SRD_WS)}, s{sT0} offen offset:{4*n}")

    def kernel_main(self):
        k = self.k
        fused = self.o.get("fuse", 1)
        self.prologue()
        self.common_steps()
        k(f"s_cmp_eq_u32 s{sBR}, 0")
        k("s_cbranch_scc0 L_branch_b")
        st = k.state(); ns = self.nstamp; tku = dict(self.toku)
        self.branch_a()
        k("s_branch L_join")
        k("L_branch_b:")
        k.restore(st); self.nstamp = ns; self.toku = tku
        self.branch_b()
        k("L_join:")
        if fused:
            k("s_waitcnt vmcnt(0)")
            k("s_barrier")
            self.set_flag(3, "o")
            self.stamp()
            self.final_setup_roles()
            self.final_stage(True)
        self.write_stamps()
        k("L_end:")
        k("s_endpgm")
        self.slow_path()

    def kernel_final(self):
        k = self.k
        k("s_cmp_ge_u32 s2, 256")
        k("s_cbranch_scc0 L_go2")
        k("s_endpgm")
        k("L_go2:")
        k("s_load_dwordx16 s[16:31], s[0:1], 0")
        k("s_load_dwordx4 s[32:35], s[0:1], 64")
        k("s_load_dwordx2 s[36:37], s[0:1], 80")
        k(f"v_lshrrev_b32 v{vT0}, 6, v0")
        k(f"v_and_b32 v{vL}, 63, v0")
        k(f"v_readfirstlane_b32 s{sW_}, v{vT0}")
        k(f"v_lshlrev_b32 v{vL16}, 4, v{vL}")
        k(f"s_and_b32 s{sTT}, s{sW_}, 3")
        k(f"s_lshr_b32 s{sHH}, s{sW_}, 2")
        k(f"s_lshl_b32 s{sW1K}, s{sW_}, 10")
        k(f"s_lshl_b32 s{sW2K}, s{sW_}, 11")
        self.final_setup_roles()
        k("s_waitcnt lgkmcnt(0)")
        for d, p, nb in ((SRD_WS, 36, WS_BYTES), (SRD_O, 32, 2048 * 896), (SRD_A, 22, 448 * 896), (SRD_B, 28, 448 * 896)):
            k(f"s_mov_b32 s{d}, s{p}", f"s_mov_b32 s{d+1}, s{p+1}", f"s_mov_b32 s{d+2}, {nb}", f"s_mov_b32 s{d+3}, 0x20000")
        self.final_stage(False)
        k("L_end:")
        k("s_endpgm")


HEADER = open("cdna_kernels/" + NAME + ".s.ref").read().split("; Override")[0]


def desc(name, vg=256):
    return f""".amdhsa_kernel {name}
  .amdhsa_next_free_vgpr {vg}
  .amdhsa_next_free_sgpr 102
  .amdhsa_accum_offset {vg}
  .amdhsa_group_segment_fixed_size 0
  .amdhsa_kernarg_size 88
  .amdhsa_user_sgpr_count 2
  .amdhsa_user_sgpr_kernarg_segment_ptr 1
  .amdhsa_system_sgpr_workgroup_id_x 1
.end_amdhsa_kernel
"""


def finish(g, verbose=False):
    n = g.k.pad_hazards(verbose)
    errs = g.k.check_waits()
    for e in errs[:10]:
        print("WAIT?", e, file=sys.stderr)
    return g.k.text(), n


def build(opt):
    fused = opt.get("fuse", 1)
    g = Gen(opt)
    g.kernel_main()
    body, n = finish(g, opt.get("verbose"))
    kn = NAME + "_kernel"
    out = HEADER
    if fused:
        out += f"; @launch grid=(256,1,1) block=(512,1,1) lds={L_TOTAL}\n"
    else:
        out += f"; @launch kernel={kn} grid=(256,1,1) block=(512,1,1) lds={L_TOTAL}\n"
        out += f"; @launch kernel=fin_kernel grid=(256,1,1) block=(512,1,1) lds={L_TOTAL}\n"
    out += '.amdgcn_target "amdgcn-amd-amdhsa--gfx950"\n.text\n'
    out += f".globl {kn}\n.p2align 8\n.type {kn},@function\n{kn}:\n" + body + "L_code_end:\n"
    out += f".set CODE_BYTES, L_code_end - {kn} - 128\n"
    if not fused:
        g2 = Gen(dict(opt, stamps=0))
        g2.kernel_final()
        b2, _ = finish(g2)
        b2 = b2.replace("L_end", "L_end2")
        out += ".globl fin_kernel\n.p2align 8\n.type fin_kernel,@function\nfin_kernel:\n" + b2
    out += '.section .rodata,"a"\n.p2align 6\n' + desc(kn)
    if not fused:
        out += ".p2align 6\n" + desc("fin_kernel")
    return out


if __name__ == "__main__":
    opt = {}
    path = "cdna_kernels/" + NAME + ".s"
    for a in sys.argv[1:]:
        if "=" in a:
            kk, v = a.split("=")
            if kk == "out":
                path = v
            else:
                opt[kk] = int(v)
    open(path, "w").write(build(opt))
    print("wrote", path)
```

```python
import sys, math, struct
sys.path.insert(0, "tools")
from asmdsl import K, I

NAME = "gated_mix__linear_kernel_hedgehog__sliding_block__prompt"


def f2u(x):
    return struct.unpack("<I", struct.pack("<f", x))[0]


LOG2E = 1.4426950408889634
CSC = LOG2E * (28 ** -0.5)

WS_F1 = 0
WS_F3 = 0x8000
WS_F2 = 0x10000 - 0x4000
NFLAG = 640
WS_STAMP = 0x40000
WS_KB = 0x100000
WS_VB = 0x300000
WS_PART = 0x500000
WS_O = 0x600000
WS_DUMP = 0xA00000
WS_BYTES = 0x2000000

L_X = 0
L_KR = 65536
L_SP = 98304
L_WR = 106496
L_TOTAL = 163840
L_VA = 0
L_KA = 49152
L_PHI = 0
L_VF = 32768
L_KVX = 0
L_W2A = L_WR
L_W2B = 49152
L_EX = 16384

sW_, sBR, sHP, sTB, sTT, sHH, sROT = 3, 4, 5, 6, 7, 8, 9
sT0, sT1, sT2, sT3 = 10, 11, 12, 13
sW1K, sW2K = 14, 15
SRD_X, SRD_W, SRD_WS, SRD_M, SRD_O, SRD_A, SRD_B, SRD_D, SRD_Z = 40, 44, 48, 52, 56, 60, 64, 68, 72
SRD_F = SRD_X
sXO = 76
sWO = 83
sMASK = 90
sONES = 92
sWGL = 93
sCNT = 94
sRB, sCB = 95, 96
sNEG = 97
sF1 = 38
sDONE = 39
sKV = 39
sW2B = 98
sKL = 1
sST = 16


def srd(n):
    return f"s[{n}:{n+3}]"


def vr(a, n=1):
    return f"v{a}" if n == 1 else f"v[{a}:{a+n-1}]"


vL = 0
vX0, vX1, vWK, vWV, vWQ = 1, 2, 3, 4, 5
vXR = 6
vWR = 10
vLO = 11
vL16 = 12
vT0, vT1, vT2 = 13, 14, 15
X = 16
WF = 128
vPW, vA1, vA2, vA3, SEL, vKX0, vKX1, vVFW, vPA = 144, 145, 146, 147, 148, 152, 153, 154, 155
ACA, ACB = 160, 176
vG = 192
vM28 = 193
vC = 194
vB = 196
vPOLL = 198
vGA = 199
F8 = 200
R16A = 208
R16B = 224
WPH = 240
vU = 248
vKA, vVA, vP2 = 252, 253, 156
vGR = 157
vLF = 158
vD2 = 1
vPV = 254
vFV = 255


STAMP_REGS = list(range(16, 38, 2)) + [88, 80]


class Gen:
    def __init__(self, opt):
        self.o = opt
        self.k = K()
        self.nstamp = 0
        self.uid = 0
        self.defer = []
        self.manual_units = ()

    def stamp(self, step=None):
        if not self.o.get("stamps"):
            return
        ss = self.o.get("ss")
        if ss is None and step is not None:
            return
        if ss is not None and (step is None or not ss <= step < ss + 11):
            return
        r = STAMP_REGS[self.nstamp]
        self.k(f"{'s_memrealtime' if self.o['stamps'] == 2 else 's_memtime'} s[{r}:{r+1}]")
        self.nstamp += 1

    def lab(self, s):
        self.uid += 1
        return f"L_{s}_{self.uid}"

    def mk(self, d, p, nbytes):
        self.k(f"s_mov_b32 s{d}, s{p}", f"s_mov_b32 s{d+1}, s{p+1}", f"s_mov_b32 s{d+2}, {nbytes}", f"s_mov_b32 s{d+3}, 0x20000")

    def prologue(self):
        k = self.k
        k("s_cmp_ge_u32 s2, 256")
        k("s_cbranch_scc0 L_go")
        k("s_endpgm")
        k("L_go:")
        k("s_load_dwordx16 s[16:31], s[0:1], 0")
        k("s_load_dwordx4 s[32:35], s[0:1], 64")
        k("s_load_dwordx2 s[36:37], s[0:1], 80")
        if self.o.get("stamps"):
            k("s_memtime s[100:101]")
            k("s_memrealtime s[98:99]")
        k(f"v_lshrrev_b32 v{vT0}, 6, v0")
        k("s_nop 0")
        k(f"v_readfirstlane_b32 s{sW_}, v{vT0}")
        k(f"v_and_b32 v{vL}, 63, v0")
        k(f"s_and_b32 s{sBR}, s2, 1")
        k(f"s_bfe_u32 s{sT0}, s2, 0x20001")
        k(f"s_bfe_u32 s{sHP}, s2, 0x30003")
        k(f"s_lshr_b32 s{sT1}, s2, 6")
        k(f"s_lshl_b32 s{sTB}, s{sT0}, 2")
        k(f"s_add_u32 s{sTB}, s{sTB}, s{sT1}")
        if self.o.get("rot", 1):
            k(f"s_lshl_b32 s{sT1}, s{sT1}, 1")
            k(f"s_add_u32 s{sROT}, s{sHP}, s{sT1}")
            k(f"s_cmp_ge_u32 s{sROT}, 7")
            k(f"s_cselect_b32 s{sT1}, 7, 0")
            k(f"s_sub_u32 s{sROT}, s{sROT}, s{sT1}")
        else:
            k(f"s_mov_b32 s{sROT}, 0")
        k(f"s_lshl_b32 s{sXO}, s{sROT}, 7")
        for j in range(1, 7):
            k(f"s_add_u32 s{sXO+j}, s{sXO+j-1}, 128")
            k(f"s_cmp_eq_u32 s{sXO+j}, 896")
            k(f"s_cselect_b32 s{sXO+j}, 0, s{sXO+j}")
        for j in range(7):
            k(f"s_mul_i32 s{sWO+j}, s{sXO+j}, {64*2688//128}")
        k(f"s_lshl_b32 s{sW1K}, s{sW_}, 10")
        k(f"s_lshl_b32 s{sW2K}, s{sW_}, 11")
        k(f"v_lshrrev_b32 v{vT0}, 3, v{vL}")
        k(f"v_and_b32 v{vT1}, 7, v{vL}")
        k(f"v_lshrrev_b32 v{vT2}, 4, v{vL}")
        k(f"v_xor_b32 v{vT2}, v{vT2}, v{vT1}")
        k(f"s_lshl_b32 s{sT0}, s{sTB}, 7")
        k(f"s_lshl_b32 s{sT1}, s{sW_}, 4")
        k(f"s_add_u32 s{sT0}, s{sT0}, s{sT1}")
        k(f"v_add_u32 v{vX0}, s{sT0}, v{vT0}")
        k(f"v_mul_u32_u24 v{vX0}, 896, v{vX0}")
        k(f"v_lshl_add_u32 v{vX0}, v{vT2}, 4, v{vX0}")
        k(f"v_xor_b32 v{vX1}, 64, v{vX0}")
        k(f"v_add_u32 v{vX1}, {8*896}, v{vX1}")
        k(f"v_lshlrev_b32 v{vT2}, 1, v{vT0}")
        k(f"v_and_b32 v{vT2}, 4, v{vT2}")
        k(f"v_xor_b32 v{vT2}, v{vT2}, v{vT1}")
        k(f"v_and_b32 v{vT1}, 1, v{vT0}")
        k(f"v_xor_b32 v{vT2}, v{vT2}, v{vT1}")
        k(f"s_and_b32 s{sT0}, s{sW_}, 1")
        k(f"s_lshl_b32 s{sT0}, s{sT0}, 1")
        k(f"v_xor_b32 v{vT2}, s{sT0}, v{vT2}")
        k(f"v_cmp_ne_u32 s[{sMASK}:{sMASK+1}], 7, v{vT2}")
        k(f"v_min_u32 v{vT2}, 6, v{vT2}")
        k(f"s_lshl_b32 s{sT0}, s{sW_}, 3")
        k(f"v_add_u32 v{vWQ}, s{sT0}, v{vT0}")
        k(f"v_mul_u32_u24 v{vWQ}, 2688, v{vWQ}")
        k(f"v_lshl_add_u32 v{vWQ}, v{vT2}, 4, v{vWQ}")
        k(f"s_mul_i32 s{sT0}, s{sHP}, 112")
        k(f"v_add_u32 v{vWQ}, s{sT0}, v{vWQ}")
        k(f"v_add_u32 v{vWK}, 896, v{vWQ}")
        k(f"v_add_u32 v{vWV}, 1792, v{vWQ}")
        k(f"s_mov_b32 s{SRD_X+2}, {2048*896}", f"s_mov_b32 s{SRD_X+3}, 0x20000")
        k(f"s_mov_b32 s{SRD_W+2}, {448*2688}", f"s_mov_b32 s{SRD_W+3}, 0x20000")
        k(f"s_cmp_eq_u32 s{sBR}, 0")
        k("s_waitcnt lgkmcnt(0)")
        k(f"s_cselect_b32 s{SRD_W}, s18, s26")
        k(f"s_cselect_b32 s{SRD_W+1}, s19, s27")
        k(f"s_mov_b32 s{SRD_X}, s16", f"s_mov_b32 s{SRD_X+1}, s17")
        if self.o.get("stamps"):
            k("s_mov_b32 s101, s98")
        self.tokx = {}
        self.toku = {}
        for part in range(3):
            self.dma_xk(0, part)
        if self.o.get("swarm", 0):
            k("s_getpc_b64 s[12:13]")
            k(f"s_and_b32 s{sT0}, s2, 0xf8")
            k(f"s_add_u32 s{sT0}, s{sT0}, s{sW_}")
            k(f"s_lshl_b32 s{sT0}, s{sT0}, 7")
            k(f"s_min_u32 s{sT0}, s{sT0}, CODE_BYTES")
            k(f"s_load_dword s{sCNT}, s[12:13], s{sT0} ; spin")
            k(f"s_load_dword s{sCNT}, s[12:13], s{sT0} offset:64 ; spin")
        self.mk(SRD_WS, 36, WS_BYTES)
        self.mk(SRD_M, 30, 896)
        self.mk(SRD_Z, 20, 16 * 1568)
        k(f"v_lshlrev_b32 v{vL16}, 4, v{vL}")
        self.mk(SRD_O, 32, 2048 * 896)
        self.mk(SRD_D, 34, 256)
        k(f"s_and_b32 s{sTT}, s{sW_}, 3")
        k(f"s_lshr_b32 s{sHH}, s{sW_}, 2")
        k(f"s_lshl_b32 s{sWGL}, s{sBR}, 3")
        k(f"s_add_u32 s{sWGL}, s{sWGL}, s{sHP}")
        k(f"s_lshl_b32 s{sWGL}, s{sWGL}, 4")
        k(f"s_add_u32 s{sWGL}, s{sWGL}, s{sTB}")
        k(f"s_lshl_b32 s{sF1}, s{sWGL}, 7")
        k(f"s_lshr_b32 s{sT0}, s2, 3")
        k(f"s_min_u32 s{sT0}, s{sT0}, 27")
        k(f"s_mul_i32 s{sT1}, s{sT0}, 37")
        k(f"s_lshr_b32 s{sT1}, s{sT1}, 8")
        k(f"s_mul_i32 s{sT2}, s{sT1}, 7")
        k(f"s_sub_u32 s{sCB}, s{sT0}, s{sT2}")
        k(f"s_and_b32 s{sRB}, s2, 7")
        k(f"s_lshl_b32 s{sRB}, s{sRB}, 2")
        k(f"s_add_u32 s{sRB}, s{sRB}, s{sT1}")
        self.mk(SRD_A, 22, 448 * 896)
        self.mk(SRD_B, 28, 448 * 896)
        k(f"v_and_b32 v{vT0}, 31, v{vL}")
        k(f"v_lshrrev_b32 v{vT1}, 5, v{vL}")
        k(f"v_bfe_u32 v{vT2}, v{vL}, 1, 3")
        k(f"v_xor_b32 v{vT2}, v{vT2}, v{vT1}")
        k(f"v_lshlrev_b32 v{vT2}, 4, v{vT2}")
        k(f"v_lshl_add_u32 v{vT2}, v{vT0}, 7, v{vT2}")
        k(f"s_lshl_b32 s{sT0}, s{sTT}, 12")
        k(f"v_add_u32 v{vXR}, s{sT0}, v{vT2}")
        for j in range(1, 4):
            k(f"v_xor_b32 v{vXR+j}, {32*j}, v{vXR}")
        k(f"v_add_u32 v{vLO}, -1, v{vT1}")
        k(f"v_and_b32 v{vT0}, 3, v{vL}")
        k(f"v_bfe_u32 v{vT2}, v{vL}, 4, 1")
        k(f"v_lshl_add_u32 v{vT0}, v{vT2}, 2, v{vT0}")
        k(f"v_add_u32 v{vT2}, 1, v{vT0}")
        k(f"v_lshrrev_b32 v{vT2}, 3, v{vT2}")
        k(f"s_mul_i32 s{sT0}, s{sHH}, 56")
        k(f"v_lshlrev_b32 v{vT0}, 3, v{vT0}")
        k(f"v_add_u32 v{vT0}, s{sT0}, v{vT0}")
        k(f"s_xor_b32 s{sT0}, s{sHH}, 1")
        k(f"s_lshl_b32 s{sT0}, s{sT0}, 6")
        k(f"v_mul_u32_u24 v{vT2}, s{sT0}, v{vT2}")
        k(f"v_add_u32 v{vT0}, v{vT2}, v{vT0}")
        k(f"v_bfe_u32 v{vT2}, v{vL}, 3, 1")
        k(f"v_lshlrev_b32 v{vT2}, 6, v{vT2}")
        k(f"v_xor_b32 v{vT0}, v{vT2}, v{vT0}")
        k(f"v_bfe_u32 v{vT2}, v{vL}, 2, 1")
        k(f"v_lshlrev_b32 v{vT2}, 4, v{vT2}")
        k(f"v_xor_b32 v{vT0}, v{vT2}, v{vT0}")
        k(f"v_and_b32 v{vT2}, 32, v{vL}")
        k(f"v_xor_b32 v{vT0}, v{vT2}, v{vT0}")
        k(f"v_bfe_u32 v{vT2}, v{vL}, 2, 2")
        k(f"v_lshl_add_u32 v{vT2}, v{vT1}, 3, v{vT2}")
        k(f"v_lshl_add_u32 v{vWR}, v{vT2}, 7, v{vT0}")
        k(f"v_add_u32 v{vWR}, {L_KR}, v{vWR}")

        k("s_barrier")
        if self.o.get("touch", 2):
            self.touch()
        self.dma_xk(1, 0)
        k(*self.misc_setup())
        k(f"s_cmp_eq_u32 s{sBR}, 0")
        k("s_cbranch_scc0 L_setup_b")
        k(*self.setup_a())
        k("s_branch L_setup_done ; spin")
        k("L_setup_b:")
        k(*self.setup_b())
        k("L_setup_done:")
        self.dma_xk(1, 1)
        self.dma_xk(1, 2)
        if self.o.get("prio", 0):
            k("s_setprio 1")

    def touch(self):
        k = self.k
        mode = self.o.get("touch", 2)
        nw, no = (1, 1) if mode == 1 else (4, 2)
        lo = 25 if mode == 1 else 49
        if mode == 1:
            k(f"s_and_b32 s{sT2}, s{sWGL}, 127")
        else:
            k(f"s_add_u32 s{sT0}, s{sHP}, 1")
            k(f"s_and_b32 s{sT0}, s{sT0}, 6")
            k(f"s_cbranch_scc1 L_t5")
            k(f"s_and_b32 s{sT2}, s{sWGL}, 31")
        k(f"s_cmp_lt_u32 s{sW_}, {nw}")
        k("s_cbranch_scc0 L_t1")
        k(f"s_mul_i32 s{sT0}, s{sT2}, {nw}")
        k(f"s_add_u32 s{sT0}, s{sT0}, s{sW_}")
        k(f"s_mul_i32 s{sT0}, s{sT0}, 49")
        k(f"v_min_u32 v{vT0}, 48, v{vL}")
        k(f"v_add_u32 v{vT0}, s{sT0}, v{vT0}")
        k(f"v_mul_u32_u24 v{vT1}, 9363, v{vT0}")
        k(f"v_lshrrev_b32 v{vT1}, 17, v{vT1}")
        k(f"v_mul_u32_u24 v{vT2}, 14, v{vT1}")
        k(f"v_sub_u32 v{vT2}, v{vT0}, v{vT2}")
        k(f"v_add_u32 v{vT2}, 1, v{vT2}")
        k(f"v_lshrrev_b32 v{vT2}, 3, v{vT2}")
        k(f"v_add_u32 v{vT1}, v{vT1}, v{vT2}")
        k(f"v_mul_u32_u24 v{vT1}, 7, v{vT1}")
        k(f"v_add_lshl_u32 v{vT0}, v{vT0}, v{vT1}, 7")
        k.uncounted(f"buffer_load_dword v{vG}, v{vT0}, {srd(SRD_W)}, 0 offen ; spin")
        k("s_branch L_t5 ; spin")
        k("L_t1:")
        k(f"s_cmp_lt_u32 s{sW_}, {nw + no}")
        k("s_cbranch_scc0 L_t3")
        k(f"s_mul_i32 s{sT0}, s{sT2}, {no}")
        k(f"s_add_u32 s{sT0}, s{sT0}, s{sW_}")
        k(f"s_sub_u32 s{sT0}, s{sT0}, {nw}")
        k(f"s_mul_i32 s{sT0}, s{sT0}, {lo*128}")
        k(f"v_min_u32 v{vT0}, {lo-1}, v{vL}")
        k(f"v_lshlrev_b32 v{vT0}, 7, v{vT0}")
        k(f"s_cmp_eq_u32 s{sBR}, 0")
        k("s_cbranch_scc0 L_t2")
        k.uncounted(f"buffer_load_dword v{vG}, v{vT0}, {srd(SRD_A)}, s{sT0} offen ; spin")
        k("s_branch L_t5 ; spin")
        k("L_t2:")
        k.uncounted(f"buffer_load_dword v{vG}, v{vT0}, {srd(SRD_B)}, s{sT0} offen ; spin")
        k("s_branch L_t5 ; spin")
        k("L_t3:")
        k(f"s_cmp_eq_u32 s{sW_}, {nw + no}")
        k("s_cbranch_scc0 L_t5")
        k(f"v_min_u32 v{vT0}, 6, v{vL}")
        k(f"v_lshlrev_b32 v{vT0}, 7, v{vT0}")
        k.uncounted(f"buffer_load_dword v{vG}, v{vT0}, {srd(SRD_M)}, 0 offen ; spin")
        if mode == 1:
            k(f"v_min_u32 v{vT0}, 128, v{vT0}")
        k(f"s_mul_i32 s{sT0}, s{sT2}, {(2 if mode == 1 else 7)*128}")
        k.uncounted(f"buffer_load_dword v{vPV}, v{vT0}, {srd(SRD_Z)}, s{sT0} offen ; spin")
        k("L_t5:")

    def late0(self):
        k = self.k
        k(f"s_lshr_b32 s{sT0}, s2, 3")
        k(f"s_lshr_b32 s{sT1}, s{sW_}, 1")
        k(f"s_or_b32 s{sT0}, s{sT0}, s{sT1}")
        k(f"s_cmp_eq_u32 s{sT0}, 0")
        k("s_cbranch_scc0 L_nozero")
        k(f"s_lshl_b32 s{sT0}, s{sW_}, 6")
        k(f"v_add_u32 v{vT0}, s{sT0}, v{vL}")
        k(f"v_min_u32 v{vT0}, 79, v{vT0}")
        k(f"v_lshlrev_b32 v{vT0}, 7, v{vT0}")
        k(f"s_mul_i32 s{sT0}, s2, {80*128}")
        k(f"v_mov_b32 v{vT1}, 0")
        k.uncounted(f"buffer_store_dword v{vT1}, v{vT0}, {srd(SRD_WS)}, s{sT0} offen sc1")
        k("L_nozero:")
        if self.o.get("warm", 0):
            k("s_getpc_b64 s[12:13]")
            k(f"s_lshl_b32 s{sT0}, s{sW_}, 6")
            k(f"v_add_u32 v{vT0}, s{sT0}, v{vL}")
            k(f"v_lshlrev_b32 v{vT0}, 7, v{vT0}")
            k(f"v_min_u32 v{vT0}, CODE_BYTES, v{vT0}")
            k(f"s_cmp_lt_u32 s{sW_}, 3")
            k("s_cbranch_scc0 L_nowarm")
            k.uncounted(f"global_load_dword v{vFV}, v{vT0}, s[12:13]")
            k("L_nowarm:")

    def late1(self):
        k = self.k
        k(f"s_add_u32 s{sT0}, s{sROT}, s{sW_}")
        k(f"s_cmp_ge_u32 s{sT0}, 7")
        k(f"s_cselect_b32 s{sT1}, 7, 0")
        k(f"s_sub_u32 s{sT0}, s{sT0}, s{sT1}")
        k(f"s_lshl_b32 s{sT0}, s{sT0}, 7")
        k(f"v_lshlrev_b32 v{vT0}, 1, v{vGR}")
        k(f"buffer_load_ushort v{vU}, v{vT0}, {srd(SRD_M)}, s{sT0} offen")
        k(f"s_mul_i32 s{sT0}, s{sHP}, 3136")
        k(f"s_add_u32 s{SRD_Z+2}, s{sT0}, 3136")
        k(f"s_add_u32 m0, s{sW1K}, {L_SP}")
        k(f"s_add_u32 s{sT0}, s{sT0}, s{sW1K}")
        k(f"buffer_load_dwordx4 v{vL16}, {srd(SRD_Z)}, s{sT0} offen lds")

    def misc_setup(self):
        g = [f"v_and_b32 v{vT0}, 31, v{vL}",
             f"v_cmp_eq_u32 vcc, 28, v{vT0}\ns_mov_b32 s{sONES}, 0x3f803f80\ns_mov_b32 s{sNEG}, 0xff800000\nv_cndmask_b32 v{vM28}, 0, -1, vcc",
             f"v_and_b32 v{vGR}, 0x33, v{vL}", f"v_bfe_u32 v{vT0}, v{vL}, 2, 1", f"v_lshl_or_b32 v{vGR}, v{vT0}, 3, v{vGR}",
             f"v_bfe_u32 v{vT1}, v{vL}, 3, 1", f"v_lshl_or_b32 v{vGR}, v{vT1}, 2, v{vGR}",
             f"v_lshlrev_b32 v{vT0}, 1, v{vT0}", f"v_and_b32 v{vT1}, 1, v{vL}", f"v_or_b32 v{vT0}, v{vT0}, v{vT1}",
             f"v_bfe_u32 v{vT1}, v{vL}, 1, 1", f"v_lshl_or_b32 v{vT0}, v{vT1}, 2, v{vT0}", f"v_xor_b32 v{vT0}, 7, v{vT0}",
             f"v_lshlrev_b32 v{vT0}, 4, v{vT0}", f"v_lshl_add_u32 v{vT0}, v{vGR}, 7, v{vT0}",
             f"s_lshl_b32 s{sT0}, s{sW_}, 13", f"s_add_u32 s{sT0}, s{sT0}, {L_WR}", f"v_add_u32 v{vGA}, s{sT0}, v{vT0}",
             ]
        return g

    def w2_setup(self):
        g = [
             f"v_lshrrev_b32 v{vT0}, 3, v{vL}", f"v_and_b32 v{vT1}, 7, v{vL}", f"v_bfe_u32 v{vT2}, v{vL}, 4, 2",
             f"v_lshlrev_b32 v{vT2}, 1, v{vT2}", f"v_xor_b32 v{vT1}, v{vT2}, v{vT1}",
             f"s_lshl_b32 s{sT0}, s{sW_}, 3\nv_add_u32 v{vD2}, s{sT0}, v{vT0}",
             f"v_mul_u32_u24 v{vD2}, 896, v{vD2}", f"v_lshl_add_u32 v{vD2}, v{vT1}, 4, v{vD2}",
             f"s_lshl_b32 s{sT0}, s{sCB}, 7\nv_add_u32 v{vD2}, s{sT0}, v{vD2}",
             ]
        g += [f"s_add_u32 s{sW2B}, s{sW1K}, {L_W2A}", f"s_add_u32 s{sW2B+1}, s{sW1K}, {L_W2B}",
              f"s_and_b32 s{sXO}, s{sRB}, {3 if self.o.get('wrot', 1) else 0}", f"s_lshl_b32 s{sXO}, s{sXO}, 14"]
        for i in range(1, 7):
            g += [f"s_add_u32 s{sXO+i}, s{sXO+i-1}, 8192", f"s_cmp_eq_u32 s{sXO+i}, {7*8192}", f"s_cselect_b32 s{sXO+i}, 0, s{sXO+i}"]
        return g

    def setup_b(self):
        CD, CO = R16A, R16B
        mk = [f"v_and_b32 v{vT0}, 31, v{vL}", f"v_lshrrev_b32 v{vT2}, 5, v{vL}",
              f"v_lshlrev_b32 v{vT2}, 2, v{vT2}", f"v_sub_u32 v{vT0}, v{vT0}, v{vT2}", f"v_mov_b32 v{vT1}, s{sNEG}"]
        for r in range(16):
            cr = (r & 3) + 8 * (r >> 2)
            mk += [f"v_subrev_u32 v{CD+r}, {cr}, v{vT0}", f"v_ashrrev_i32 v{CD+r}, 31, v{CD+r}",
                   f"v_and_b32 v{CD+r}, v{vT1}, v{CD+r}", f"v_xor_b32 v{CO+r}, v{vT1}, v{CD+r}"]
        mk += [f"s_mul_i32 s{sT0}, s{sHH}, 24576", f"s_lshl_b32 s{sT1}, s{sTT}, 11", f"s_add_u32 s{sKL}, s{sT0}, s{sT1}",
               f"v_add_u32 v{vVA}, s{sKL}, v{vL16}", f"v_add_u32 v{vKA}, {L_KA}, v{vVA}",
               f"s_lshl_b32 s{sT0}, s{sHP}, 1", f"s_add_u32 s{sT0}, s{sT0}, s{sHH}", f"s_lshl_b32 s{sT0}, s{sT0}, 6",
               f"s_lshl_b32 s{sT1}, s{sTB}, 2", f"s_add_u32 s{sT0}, s{sT0}, s{sT1}", f"s_add_u32 s{sT0}, s{sT0}, s{sTT}",
               f"s_lshl_b32 s{sKV}, s{sT0}, 11",
               f"v_and_b32 v{vT0}, 1, v{vL}", f"v_add_u32 v{vT0}, 1, v{vT0}", f"v_min_u32 v{vT0}, s{sTB}, v{vT0}",
               f"v_lshlrev_b32 v{vT0}, 7, v{vT0}", f"v_sub_u32 v{vP2}, s{sF1}, v{vT0}",
               f"v_mov_b32 v{vC}, {hex(f2u(CSC))}"]
        return mk

    def setup_a(self):
        g = [
            f"v_and_b32 v{vT0}, 3, v{vL}", f"v_bfe_u32 v{vT1}, v{vL}, 4, 1", f"v_lshl_add_u32 v{vT0}, v{vT1}, 2, v{vT0}",
            f"v_bfe_u32 v{vT1}, v{vL}, 2, 2", f"v_lshrrev_b32 v{vT2}, 5, v{vL}", f"v_lshl_add_u32 v{vT1}, v{vT2}, 2, v{vT1}",
            f"v_mul_u32_u24 v{vPA}, 56, v{vT1}", f"v_lshl_add_u32 v{vPA}, v{vT0}, 3, v{vPA}",
            f"s_mul_i32 s{sT0}, s{sHH}, 1568", f"s_add_u32 s{sT0}, s{sT0}, {L_SP}", f"v_add_u32 v{vPA}, s{sT0}, v{vPA}",
            f"s_and_b32 s{sT0}, s{sW_}, 1", f"s_lshl_b32 s{sT0}, s{sT0}, 3", f"v_add_u32 v{vT0}, s{sT0}, v{vT0}",
            f"v_and_b32 v{vT2}, 5, v{vT1}", f"v_xor_b32 v{vT0}, v{vT2}, v{vT0}",
            f"v_and_b32 v{vT2}, 8, v{vL}", f"v_xor_b32 v{vT0}, v{vT2}, v{vT0}",
            f"v_lshlrev_b32 v{vT0}, 3, v{vT0}", f"v_lshl_add_u32 v{vT0}, v{vT1}, 7, v{vT0}",
            f"s_bfe_u32 s{sT0}, s{sW_}, 0x10001", f"s_lshl_b32 s{sT1}, s{sT0}, 14", f"v_add_u32 v{vA1}, s{sT1}, v{vT0}",
            f"v_xor_b32 v{vA2}, 16, v{vA1}",
            f"s_lshl_b32 s{sT1}, s{sT0}, 13", f"v_add_u32 v{vA3}, s{sT1}, v{vL16}",
            f"s_lshl_b32 s{sT1}, s{sHP}, 1", f"s_add_u32 s{sT0}, s{sT0}, s{sT1}", f"s_lshl_b32 s{sT0}, s{sT0}, 4",
            f"s_add_u32 s{sT0}, s{sT0}, s{sTB}", f"s_lshl_b32 s{sT0}, s{sT0}, 1", f"s_and_b32 s{sT1}, s{sW_}, 1",
            f"s_add_u32 s{sT0}, s{sT0}, s{sT1}", f"s_lshl_b32 s{sT0}, s{sT0}, 11", f"s_add_u32 s{sKV}, s{sT0}, {WS_PART}",
            f"s_lshl_b32 s{sT0}, s{sHP}, 1", f"s_add_u32 s{sT0}, s{sT0}, s{sHH}", f"s_lshl_b32 s{sT0}, s{sT0}, 16",
            f"s_lshl_b32 s{sT1}, s{sTT}, 10", f"s_add_u32 s{sT0}, s{sT0}, s{sT1}", f"s_add_u32 s{sKL}, s{sT0}, {WS_PART}",
            f"v_and_b32 v{vT0}, 5, v{vL}", f"v_bfe_u32 v{vT1}, v{vL}, 1, 1", f"v_lshl_or_b32 v{vT0}, v{vT1}, 3, v{vT0}",
            f"v_bfe_u32 v{vT1}, v{vL}, 3, 1", f"v_lshl_or_b32 v{vT0}, v{vT1}, 1, v{vT0}",
            f"v_lshrrev_b32 v{vT1}, 5, v{vL}", f"v_xor_b32 v{vT0}, v{vT1}, v{vT0}", f"v_lshlrev_b32 v{vT0}, 3, v{vT0}",
            f"v_and_b32 v{vT1}, 31, v{vL}", f"v_lshl_add_u32 v{vT0}, v{vT1}, 7, v{vT0}",
            f"s_lshl_b32 s{sT0}, s{sW_}, 12", f"v_add_u32 v{vPW}, s{sT0}, v{vT0}",
            f"v_add_u32 v{vVFW}, s{sW2K}, v{vL16}",
            f"v_add_u32 v{vKX0}, s{sW1K}, v{vL16}",
            f"s_lshl_b32 s{sT0}, s{sHH}, 12", f"v_add_u32 v{vKX1}, s{sT0}, v{vL16}",
            f"v_and_b32 v{vT0}, 15, v{vL}", f"v_lshlrev_b32 v{vT0}, 7, v{vT0}",
            f"s_lshl_b32 s{sT0}, s{sHP}, 11", f"v_add_u32 v{vP2}, s{sT0}, v{vT0}",
            f"v_mov_b32 v{vC}, {hex(f2u(LOG2E))}", f"v_and_b32 v{vLF}, 1.0, v{vLO}",
            f"v_and_b32 v{vT0}, 31, v{vL}", f"v_lshrrev_b32 v{vT1}, 5, v{vL}", f"v_lshlrev_b32 v{vT1}, 2, v{vT1}",
            f"v_sub_u32 v{vT0}, v{vT0}, v{vT1}", f"v_mov_b32 v{vT1}, 0x3f80", f"v_mov_b32 v{vT2}, 0x3f800000"]
        for p in range(4):
            c0 = (2 * p & 3) + 8 * (2 * p >> 2)
            g += [f"v_cmp_eq_u32 vcc, {c0}, v{vT0}", f"v_cndmask_b32 v{SEL+p}, 0, v{vT1}, vcc",
                  f"v_cmp_eq_u32 vcc, {c0+1}, v{vT0}", f"v_cndmask_b32 v{SEL+p}, v{SEL+p}, v{vT2}, vcc"]
        return g

    def dma_xk(self, s, part):
        k = self.k
        if part < 2:
            k(f"s_add_u32 m0, s{sW2K}, {L_X + (s % 4) * 16384 + 1024 * part}")
            k(f"buffer_load_dwordx4 v{vX0 + part}, {srd(SRD_X)}, s{sXO+s} offen lds")
        else:
            k(f"s_add_u32 m0, s{sW1K}, {L_KR + (s % 4) * 8192}")
            self.tokx[s] = k(f"buffer_load_dwordx4 v{vWK}, {srd(SRD_W)}, s{sWO+s} offen lds")

    def dma_unit(self, u):
        k = self.k
        j = u % 7
        k(f"s_add_u32 m0, s{sW1K}, {L_WR + j * 8192}")
        k(f"s_mov_b64 exec, s[{sMASK}:{sMASK+1}]")
        self.toku[u] = k(f"buffer_load_dwordx4 v{vWV if u < 7 else vWQ}, {srd(SRD_W)}, s{sWO+j} offen lds")
        k("s_mov_b64 exec, -1")

    def dma_w2(self, half, i, rot=True):
        k = self.k
        if rot:
            k(f"s_add_u32 m0, s{sXO+i}, s{sW2B + half}")
            k(f"s_mul_i32 s{sT3}, s{sXO+i}, 7")
        else:
            k(f"s_add_u32 m0, s{sW2B + half}, {i*8192}")
            k(f"s_mov_b32 s{sT3}, {i*64*896}")
        return k(f"buffer_load_dwordx4 v{vD2}, {srd(SRD_B if half else SRD_A)}, s{sT3} offen lds")

    def mfma1(self, s, j):
        m, c = divmod(s, 7)
        acc = ACB if m == 1 else ACA
        xf = vr(X + (4 * c + j) * 4, 4)
        wf = vr(WF + 4 * j, 4)
        cin = "0" if (c == 0 and j == 0) else vr(acc, 16)
        a, b = (xf, wf) if m == 1 else (wf, xf)
        return f"v_mfma_f32_32x32x16_bf16 {vr(acc,16)}, {a}, {b}, {cin}"

    def unit_step(self, u):
        if u == 0 and self.o.get("v0early", 0):
            return 0
        if u in self.manual_units:
            return -1
        return max(5, 7 + u - self.o.get("ra", 3))

    def gemm_step(self, s, bg=None, mem=None, end=None, extra_vm=None, w=(1, 1, 1, 1), flush=False, noold=False):
        k = self.k
        bg = list(bg) if bg else []
        mem = mem or {}
        tok = self.tokx[s] if s < 7 else self.toku[s - 7]
        if extra_vm is not None and extra_vm[1] > tok[1]:
            tok = extra_vm
        k.wait(vm=tok)
        k("s_barrier")
        self.stamp(step=s)
        base = (s % 4) * 8192 if s < 7 else ((s - 7) % 7) * 8192
        tr = {}

        def rd(j):
            d = WF + 4 * j
            if s < 7:
                k(f"ds_read_b128 {vr(X + (4*s+j)*4, 4)}, v{vXR+j} offset:{L_X + (s % 4) * 16384}")
            k(f"ds_read_b64_tr_b16 {vr(d,2)}, v{vWR} offset:{base + j*2048}")
            tr[j] = k(f"ds_read_b64_tr_b16 {vr(d+2,2)}, v{vWR} offset:{base + j*2048 + 512}")
        dm = {1: [], 2: [], 3: []}
        if s + 2 <= 6:
            for p in range(3):
                dm[p + 1].append(lambda p=p: self.dma_xk(s + 2, p))
        us = [u for u in range(14) if self.unit_step(u) == s]
        for n, u in enumerate(us):
            dm[3 if s + 2 <= 6 else min(3, self.o.get("dslot", 2) + n)].append(lambda u=u: self.dma_unit(u))
        cost = [sum(2 if ("exp" in l or "rcp" in l or "mfma" in l) else 1 for l in x.split("\n")) for x in bg]
        tot = sum(cost); cum = [sum(w[:i + 1]) / sum(w) * tot for i in range(4)]
        slots = [[], [], [], []]
        acc = 0
        for x, c in zip(bg, cost):
            i = min(j for j in range(4) if acc < cum[j] - 1e-9 or j == 3)
            slots[i].append(x); acc += c

        def slot(i):
            for x in self.defer:
                k(x)
            self.defer = []
            for f in mem.get(i, []):
                f()
            for f in dm.get(i, []):
                f()
            for x in slots[i]:
                if x.startswith("ds_write"):
                    self.defer.append(x)
                else:
                    k(x)
        old = s >= 1 and not noold
        if old:
            k(self.mfma1(s - 1, 2))
        rd(0); rd(1)
        slot(0)
        if old:
            k(self.mfma1(s - 1, 3))
        rd(2); rd(3)
        if s == 6:
            k(f"v_add_u32 v{vWR}, {L_WR - L_KR}, v{vWR}")
        slot(1)
        for j in range(2):
            k.wait(lg=tr[j])
            k(self.mfma1(s, j))
            slot(2 + j)
        k.wait(lg=tr[3])
        if flush:
            for j in (2, 3):
                k(self.mfma1(s, j))
                for x in self.defer:
                    k(x)
                self.defer = []
        for f in end or []:
            f()

    def pack16(self, src, dst):
        return [f"v_cvt_pk_bf16_f32 v{dst+i}, v{src+2*i}, v{src+2*i+1}" for i in range(8)]

    def zero_pad(self, dst):
        return [f"v_and_b32 v{dst+6}, v{vLO}, v{dst+6}", f"v_and_b32 v{dst+7}, v{vLO}, v{dst+7}"]

    def set_flag(self, area):
        k = self.k
        k(f"s_add_u32 s{sT0}, s{sF1}, {area}")
        k("s_mov_b64 exec, 1")
        k(f"buffer_store_dword v{vFV}, off, {srd(SRD_F)}, s{sT0} sc1")
        k("s_mov_b64 exec, -1")

    def poll_issue(self, sr=SRD_WS):
        return self.k(f"buffer_load_dword v{vPV}, v{vPOLL}, {srd(sr)}, 0 offen sc1")

    def poll_check(self, sr=SRD_WS):
        k = self.k
        l, d = self.lab("pl"), self.lab("pd")
        k(f"s_mov_b32 s{sCNT}, 0")
        k(f"{l}:")
        k(f"v_cmp_eq_u32 vcc, 0, v{vPV}")
        k(f"s_cbranch_vccz {d}")
        k(f"s_cmp_lt_u32 s{sCNT}, 0x8000")
        k(f"s_cbranch_scc0 {d}")
        k.uncounted(f"buffer_load_dword v{vPV}, v{vPOLL}, {srd(sr)}, 0 offen sc1 ; spin")
        k(f"s_add_u32 s{sCNT}, s{sCNT}, 1")
        k("s_waitcnt vmcnt(0) ; spin")
        k(f"s_branch {l} ; spin")
        k(f"{d}:")

    def poll_one(self, w):
        k = self.k
        d = self.lab("po")
        k(f"s_cmp_eq_u32 s{sW_}, {w}")
        k(f"s_cbranch_scc0 {d}")
        k(f"v_mov_b32 v{vPV}, 0")
        self.poll_check()
        k(f"{d}:")

    def announce(self):
        k = self.k
        k(f"s_lshr_b32 s{sT0}, s2, 3")
        k(f"s_or_b32 s{sT0}, s{sT0}, s{sW_}")
        k(f"s_cmp_eq_u32 s{sT0}, 0")
        k("s_cbranch_scc0 L_noann")
        k(f"s_lshl_b32 s{sT0}, s2, 2")
        k(f"v_mov_b32 v{vFV}, 1")
        k("s_mov_b64 exec, 1")
        k.uncounted(f"buffer_store_dword v{vFV}, off, {srd(SRD_D)}, s{sT0} sc1")
        k("s_mov_b64 exec, -1")
        k("L_noann:")

    def ann_issue(self):
        k = self.k
        k(f"v_and_b32 v{vPOLL}, 7, v{vL}")
        k(f"v_lshlrev_b32 v{vPOLL}, 2, v{vPOLL}")
        k(f"v_mov_b32 v{vFV}, 1")
        k(f"s_mov_b32 s{SRD_F}, s{SRD_WS}")
        k(f"s_mov_b32 s{SRD_F+1}, s{SRD_WS+1}")
        k(f"s_cmp_eq_u32 s{sW_}, 0")
        k(f"s_cselect_b32 s{SRD_F+2}, {NFLAG*128}, 0")
        self.poll_issue(SRD_D)

    def ann_check_step(self):
        return 7 + min(u for u in range(14) if self.unit_step(u) >= 6)

    def common_steps(self):
        k = self.k

        def gate():
            k(f"v_mov_b32 v{vU+1}, 0")
            k(f"v_mov_b32 v{vU+2}, v{vU}")
            k(f"v_mov_b32 v{vU+3}, 0")
            k(f"s_cmp_lt_u32 s{sW_}, 7")
            k(f"s_cbranch_scc0 L_nogate")
            k.uncounted(f"ds_write_b128 v{vGA}, {vr(vU,4)}")
            k(f"L_nogate:")
        def wphi():
            k(f"s_cmp_eq_u32 s{sBR}, 0")
            k("s_cbranch_scc0 L_nowp")
            for s in range(2):
                for e in range(2):
                    k.uncounted(f"ds_read_b64_tr_b16 {vr(WPH+4*s+2*e,2)}, v{vPA} offset:{(16*s+8*e)*56}")
            k("L_nowp:")
        wzero = [f"v_and_b32 v{vT0}, 31, v{vL}", f"v_subrev_u32 v{vT0}, 28, v{vT0}", f"v_ashrrev_i32 v{vT0}, 31, v{vT0}"]
        wzero += [f"v_and_b32 v{WPH+i}, v{vT0}, v{WPH+i}" for i in range(8)]
        for s in range(7):
            kw = {}
            if s == 0:
                kw["mem"] = {3: [self.late0]}
            if s == 2:
                kw["mem"] = {3: [self.announce, self.late1]}
            if s == 4:
                kw["end"] = [gate, wphi]
            if s == 5:
                kw["end"] = [lambda: k(*(self.w2_setup() + wzero))]
            if s == 6:
                kw["mem"] = {1: [self.ann_issue]}
            self.gemm_step(s, **kw)
            if s == 0:
                self.stamp()

    def ann_check(self):
        self.poll_check(SRD_D)
        self.k(f"v_mov_b32 v{vPOLL}, v{vP2}")

    def o_epilogue(self, OA, eps):
        k = self.k
        if eps:
            k(f"v_add_f32 v{vT0}, {hex(f2u(1e-6))}, v{OA+12}")
            k(f"v_mul_f32 v{vT0}, v{vG}, v{vT0}")
        else:
            k(f"v_mul_f32 v{vT0}, v{vG}, v{OA+12}")
        k(f"v_rcp_f32 v{vB}, v{vT0}")
        k(f"s_lshl_b32 s{sT0}, s{sTB}, 2")
        k(f"v_mov_b32 v{vB+1}, v{vB}")
        k(f"s_add_u32 s{sT0}, s{sT0}, s{sTT}")
        k(f"s_lshl_b32 s{sT0}, s{sT0}, 16")
        k(f"v_permlane32_swap_b32 v{vB}, v{vB+1}")
        k(f"s_lshr_b32 s{sT1}, s{sWGL}, 4")
        k(f"s_lshl_b32 s{sT1}, s{sT1}, 1")
        k(f"s_add_u32 s{sT1}, s{sT1}, s{sHH}")
        k(f"s_lshl_b32 s{sT1}, s{sT1}, 11")
        k(f"s_add_u32 s{sT0}, s{sT0}, s{sT1}")
        k(f"s_add_u32 s{sT0}, s{sT0}, {WS_O}")
        for h in range(2):
            for i in range(8 * h, 8 * h + 8):
                k(f"v_mul_f32 v{OA+i}, v{vB+1}, v{OA+i}")
            for i in range(4 * h, 4 * h + 4):
                k(f"v_cvt_pk_bf16_f32 v{F8+i}, v{OA+2*i}, v{OA+2*i+1}")
            if h:
                k(*self.zero_pad(F8))
            k(f"buffer_store_dwordx4 {vr(F8+4*h,4)}, v{vL16}, {srd(SRD_WS)}, s{sT0} offen offset:{1024*h} sc1")

    def branch_b(self):
        k = self.k
        CD, CO = R16A, R16B

        def pack(acc, isv):
            g = self.pack16(acc, F8)
            if isv:
                g += [f"v_bfi_b32 v{F8+i}, v{vM28}, s{sONES}, v{F8+i}" for i in range(8)]
            else:
                g += self.zero_pad(F8)
            a = vVA if isv else vKA
            return g

        def lds_put(isv, h):
            k(f"ds_write_b128 v{vVA if isv else vKA}, {vr(F8+4*h,4)} offset:{8*2048+1024*h}")
        tk = {}

        def store(isv, h):
            k(f"s_add_u32 s{sT0}, s{sKV}, {WS_VB if isv else WS_KB}")
            tk["Vst" if isv else "Kst"] = k(f"buffer_store_dwordx4 {vr(F8+4*h,4)}, v{vL16}, {srd(SRD_WS)}, s{sT0} offen offset:{1024*h} sc1")

        nb = [f"s_mov_b32 s{SRD_Z}, s{SRD_WS}\ns_mov_b32 s{SRD_Z+1}, s{SRD_WS+1}\ns_cmp_ge_u32 s{sTB}, 1\ns_cselect_b32 s{SRD_Z+2}, {WS_BYTES}, 0",
              f"s_mov_b32 s{SRD_M}, s{SRD_WS}\ns_mov_b32 s{SRD_M+1}, s{SRD_WS+1}\ns_cmp_ge_u32 s{sTB}, 2\ns_cselect_b32 s{SRD_M+2}, {WS_BYTES}, 0"]

        def nb_dma(isv, whichs=(1, 2)):
            t = None
            for which in whichs:
                sr = SRD_Z if which == 1 else SRD_M
                k(f"s_add_u32 m0, s{sKL}, {(L_VA if isv else L_KA) + (8 - 4*which)*2048}")
                k(f"s_add_u32 s{sT0}, s{sKV}, {(WS_VB if isv else WS_KB) - which*4*2048}")
                k(f"buffer_load_dwordx4 v{vL16}, {srd(sr)}, s{sT0} offen sc1 lds")
                t = k(f"buffer_load_dwordx4 v{vL16}, {srd(sr)}, s{sT0} offen offset:1024 sc1 lds")
            return t

        AC = self.ann_check_step()
        KF = max(AC + 1, self.o.get("kflag", 12))
        VS = self.o.get("vst", 15)
        VF_ = self.o.get("vflag", 19)
        PS = self.o.get("kpoll", 15)
        KD = self.o.get("kdma", 18)

        def kdma1():
            k.wait(vm=tk["p"])
            self.poll_check()
            nb_dma(False, (1,))
            k(f"v_add_u32 v{vPOLL}, {WS_F2 - WS_F1}, v{vPOLL}")
        for s in range(7, 21):
            kw = {}
            mem = {0: [], 1: [], 2: [], 3: []}
            end = []
            if s == 7:
                kw["bg"] = pack(ACA, False); kw["w"] = (0, 0, 1, 1)
            if s == 8:
                mem[0].append(lambda: store(False, 0)); mem[1].append(lambda: store(False, 1))
                mem[3].append(lambda: lds_put(False, 0))
            if s == 9:
                mem[3].append(lambda: lds_put(False, 1))
                kw["bg"] = nb
            if s == AC:
                end.append(self.ann_check)
            if s == KF:
                kw["extra_vm"] = tk["Kst"]
                mem[0].append(lambda: self.set_flag(WS_F1))
            if s == 14:
                kw["bg"] = pack(ACB, True); kw["w"] = (0, 0, 1, 1)
            if s == 15:
                mem[3].append(lambda: lds_put(True, 0))
            if s == 16:
                mem[3].append(lambda: lds_put(True, 1))
            if s == PS:
                mem[0].append(lambda: tk.__setitem__("p", self.poll_issue()))
            if s == VS:
                mem[0].append(lambda: store(True, 0)); mem[1].append(lambda: store(True, 1))
            if s == VF_:
                kw["extra_vm"] = tk["Vst"]
                mem[0].append(lambda: self.set_flag(WS_F2))
            if s == KD:
                mem[2].append(kdma1)
            if s == KD + 1:
                mem[2].append(lambda: tk.__setitem__("K", nb_dma(False, (2,))))
            self.gemm_step(s, mem=mem, end=end, flush=(s == 20), **kw)
            if s in (7, 14):
                self.stamp()
        self.stamp()
        S = [16, 32]; P = lambda n: 48 + 8 * n; QF = 120; VFb = lambda n: 144 + 8 * (n % 4); OA = 176
        KE = self.o.get("kearly", 4)
        spare = {KE + 3: 208, KE + 4: 216, KE + 5: 240}
        KR = lambda n: spare.get(n, 128 + 8 * (n % 2))
        assert KE + 5 >= 8
        order = list(range(8, -1, -1))
        tK, tV = {}, {}

        def rdK(n):
            i = order[n]
            k(f"ds_read_b128 {vr(KR(n),4)}, v{vKA} offset:{i*2048}")
            tK[n] = k(f"ds_read_b128 {vr(KR(n)+4,4)}, v{vKA} offset:{i*2048+1024}")

        def rdV(n):
            i = order[n]
            k(f"ds_read_b128 {vr(VFb(n),4)}, v{vVA} offset:{i*2048}")
            tV[n] = k(f"ds_read_b128 {vr(VFb(n)+4,4)}, v{vVA} offset:{i*2048+1024}")

        def mS(n):
            i = order[n]
            c = vr(CD, 16) if i == 8 else vr(CO, 16) if i == 0 else "0"
            return [(tK, n, f"v_mfma_f32_32x32x16_bf16 {vr(S[n%2],16)}, {vr(KR(n),4)}, {vr(QF,4)}, {c}"),
                    (None, n, f"v_mfma_f32_32x32x16_bf16 {vr(S[n%2],16)}, {vr(KR(n)+4,4)}, {vr(QF+4,4)}, {vr(S[n%2],16)}")]

        def mPV(n):
            c = "0" if n == 0 else vr(OA, 16)
            return [(tV, n, f"v_mfma_f32_32x32x16_bf16 {vr(OA,16)}, {vr(VFb(n),4)}, {vr(P(n),4)}, {c}"),
                    (None, n, f"v_mfma_f32_32x32x16_bf16 {vr(OA,16)}, {vr(VFb(n)+4,4)}, {vr(P(n)+4,4)}, {vr(OA,16)}")]

        def soft(n):
            s = S[n % 2]; p = P(n)
            out = []
            for i in range(8):
                out.append(f"v_exp_f32 v{s+2*i}, v{s+2*i}\nv_exp_f32 v{s+2*i+1}, v{s+2*i+1}")
                if i >= 1:
                    out.append(f"v_cvt_pk_bf16_f32 v{p+i-1}, v{s+2*i-2}, v{s+2*i-1}")
            out.append(f"v_cvt_pk_bf16_f32 v{p+7}, v{s+14}, v{s+15}")
            return out

        def emit(mf, sf, reads):
            per = -(-len(sf) // max(len(mf), 1))
            for i, (tt, n, m) in enumerate(mf):
                if tt is not None:
                    k.wait(lg=tt[n])
                k(m)
                if i == len(mf) - 1:
                    for r in reads:
                        r()
                part = sf[i * per:(i + 1) * per]
                if part and self.o.get("aprio", 0):
                    part = ["s_setprio 0"] + part + ["s_setprio 1"]
                for g in part:
                    k(g)
            if not mf:
                for r in reads:
                    r()
                for g in sf:
                    k(g)

        rdK(0); rdV(0)
        VI = self.o.get("vissue", -1)
        VP = self.o.get("vpoll", 0)
        VB = self.o.get("vbar", 4)
        W2BE = self.o.get("w2b_early", 1)
        if VI < 0:
            tk["p"] = self.poll_issue()
        k(f"v_mul_f32 v{vG}, {hex(f2u(LOG2E))}, v{ACA+12}")
        for i in range(16):
            k(f"v_mul_f32 v{ACA+i}, v{vC}, v{ACA+i}")
        k(*self.pack16(ACA, QF))
        k(*self.zero_pad(QF))
        emit(mS(0), [f"v_exp_f32 v{vG}, v{vG}", f"v_add_f32 v{vG}, 1.0, v{vG}"], [])
        sf0 = soft(0)
        h0 = self.o.get("kbar", 10)
        k(*sf0[:h0])
        k.wait(vm=tk["K"])
        k("s_barrier")
        self.stamp()
        rdK(1); rdK(2)
        if VF_ == 22:
            self.set_flag(WS_F2)
        k(*sf0[h0:])
        emit(mS(1) + mPV(0), [], [])
        pend = list(range(1, 9))
        vread = 1
        w2a = list(range(7)); w2b = list(range(7)) if W2BE else []
        A0 = self.o.get("w2a0", 1)

        def after(n):
            if n == VP:
                k.wait(vm=tk["p"])
                self.poll_check()
                tk["V"] = nb_dma(True)
            elif n >= A0 and w2a:
                for _ in range(2):
                    if w2a:
                        self.dma_w2(0, w2a.pop(0))
            elif n > KE and w2b:
                for _ in range(3):
                    if w2b:
                        self.dma_w2(1, w2b.pop(0))
            if n == VI:
                tk["p"] = self.poll_issue()
        after(0)
        for n in range(1, 9):
            mf = mS(n + 1) if n + 1 < 9 else []
            reads = []
            if n + 2 < 9 and n + 2 not in tK:
                reads.append(lambda n=n: rdK(n + 2))
            if W2BE and n == KE:
                reads += [lambda m=m: rdK(m) for m in range(n + 3, 9)]
            if n > VB:
                for _ in range(self.o.get("pvper", 2)):
                    if pend and pend[0] < n and pend[0] < vread:
                        mf += mPV(pend.pop(0))
                while vread < 9 and vread < pend[0] + self.o.get("pvper", 2):
                    reads.append(lambda v=vread: rdV(v)); vread += 1
            emit(mf, soft(n), reads)
            if n == VB:
                k.wait(vm=tk["V"], lg=0 if (W2BE and KE == VB) else None)
                k("s_barrier")
                self.stamp()
                while vread < 1 + self.o.get("pvper", 2):
                    rdV(vread); vread += 1
            elif W2BE and n == KE:
                k("s_waitcnt lgkmcnt(0)")
                k("s_barrier")
            after(n)
        assert not w2a and not w2b
        while pend:
            n = pend.pop(0)
            while vread <= min(n + 2, 8):
                rdV(vread); vread += 1
            emit(mPV(n), [], [])
        self.stamp()
        k(f"v_mov_b32 v{vT0}, {hex(f2u(2.0**-60))}")
        k(f"v_mov_b32 v{vT1}, {hex(f2u(2.0**60))}")
        k(f"v_cmp_le_f32 vcc, v{vT0}, v{OA+12}")
        k(f"v_cmp_ge_f32 s[{sT0}:{sT0+1}], v{vT1}, v{OA+12}")
        k(f"s_and_b32 s{sT0}, s{sT0+1}, vcc_hi")
        if self.o.get("force_slow"):
            k(f"s_mov_b32 s{sT0}, 0")
        k(f"s_cmp_eq_u32 s{sT0}, -1")
        k("s_cbranch_scc0 L_slow")
        k("L_slow_done:")
        self.o_epilogue(OA, False)
        self.slow = dict(S=S[0], P=P(0), KF=128, VF=VFb(0), OA=OA, QF=QF, CD=CD, CO=CO, vKA=vKA, vVA=vVA)

    def slow_path(self):
        k = self.k
        d = self.slow
        S, P, KF, VF, OA, QF, CD, CO = (d[x] for x in ("S", "P", "KF", "VF", "OA", "QF", "CD", "CO"))
        vKA, vVA = d["vKA"], d["vVA"]
        vM = vT2; vA = vT0; vA2 = vT1
        k("L_slow:")
        k(f"s_lshl_b32 s{sT0}, s{sTB}, 2")
        k(f"s_add_u32 s{sT0}, s{sT0}, s{sTT}")
        k(f"s_min_u32 s{sT0}, s{sT0}, 8")
        k(f"s_sub_u32 s{sT1}, 8, s{sT0}")
        k(f"v_mov_b32 v{vM}, s{sNEG}")
        for r in range(16):
            k(f"v_xor_b32 v{CD+r}, s{sNEG}, v{CO+r}")

        def scores(tag):
            k(f"s_lshl_b32 s{sT3}, s{sT2}, 11")
            k(f"s_add_u32 s{sT0}, s{sT3}, s{sKV}")
            k(f"s_add_u32 s{sT0}, s{sT0}, {WS_KB - 8*2048}")
            k(f"buffer_load_dwordx4 {vr(KF,4)}, v{vL16}, {srd(SRD_WS)}, s{sT0} offen sc1")
            k(f"buffer_load_dwordx4 {vr(KF+4,4)}, v{vL16}, {srd(SRD_WS)}, s{sT0} offen offset:1024 sc1")
            k("s_waitcnt vmcnt(0)")
            k(f"v_mfma_f32_32x32x16_bf16 {vr(S,16)}, {vr(KF,4)}, {vr(QF,4)}, 0")
            k(f"v_mfma_f32_32x32x16_bf16 {vr(S,16)}, {vr(KF+4,4)}, {vr(QF+4,4)}, {vr(S,16)}")
            k("s_nop 15")
            k(f"s_cmp_eq_u32 s{sT2}, 8")
            k(f"s_cbranch_scc0 L_sl_a{tag}")
            for r in range(16):
                k(f"v_add_f32 v{S+r}, v{CD+r}, v{S+r}")
            k(f"L_sl_a{tag}:")
            k(f"s_cmp_eq_u32 s{sT2}, 0")
            k(f"s_cbranch_scc0 L_sl_b{tag}")
            for r in range(16):
                k(f"v_add_f32 v{S+r}, v{CO+r}, v{S+r}")
            k(f"L_sl_b{tag}:")
        k(f"s_mov_b32 s{sT2}, s{sT1}")
        k("L_sl_1:")
        scores("1")
        for r in range(8):
            k(f"v_max3_f32 v{vM}, v{vM}, v{S+2*r}, v{S+2*r+1}")
        k(f"s_add_u32 s{sT2}, s{sT2}, 1")
        k(f"s_cmp_le_u32 s{sT2}, 8")
        k("s_cbranch_scc1 L_sl_1")
        k(f"v_mov_b32 v{vA}, v{vM}")
        k(f"v_permlane32_swap_b32 v{vM}, v{vA}")
        k(f"v_max_f32 v{vM}, v{vM}, v{vA}")
        for r in range(16):
            k(f"v_mov_b32 v{OA+r}, 0")
        k(f"s_mov_b32 s{sT2}, s{sT1}")
        k("L_sl_2:")
        scores("2")
        k(f"v_add_u32 v{vA2}, s{sT3}, v{vVA}")
        k(f"ds_read_b128 {vr(VF,4)}, v{vA2}")
        k(f"ds_read_b128 {vr(VF+4,4)}, v{vA2} offset:1024")
        for r in range(16):
            k(f"v_sub_f32 v{S+r}, v{S+r}, v{vM}")
        for r in range(16):
            k(f"v_exp_f32 v{S+r}, v{S+r}")
        k(*self.pack16(S, P))
        k("s_waitcnt lgkmcnt(0)")
        k(f"v_mfma_f32_32x32x16_bf16 {vr(OA,16)}, {vr(VF,4)}, {vr(P,4)}, {vr(OA,16)}")
        k(f"v_mfma_f32_32x32x16_bf16 {vr(OA,16)}, {vr(VF+4,4)}, {vr(P+4,4)}, {vr(OA,16)}")
        k(f"s_add_u32 s{sT2}, s{sT2}, 1")
        k(f"s_cmp_le_u32 s{sT2}, 8")
        k("s_cbranch_scc1 L_sl_2")
        k("s_nop 15")
        k("s_branch L_slow_done")

    def pmfma(self):
        P = R16A
        return [f"v_mfma_f32_32x32x16_bf16 {vr(P,16)}, {vr(WPH,4)}, {vr(F8,4)}, 0\n"
                f"v_mfma_f32_32x32x16_bf16 {vr(P,16)}, {vr(WPH+4,4)}, {vr(F8+4,4)}, {vr(P,16)}"]

    def fm_sums(self, P, E, i):
        sp, sn = vU, vU + 2
        if i == 0:
            return []
        if i == 1:
            return [f"v_add_f32 v{sp}, v{E}, v{E+1}", f"v_add_f32 v{sn}, v{P}, v{P+1}"]
        if i < 12:
            return [f"v_add_f32 v{sp}, v{sp}, v{E+i}", f"v_add_f32 v{sn}, v{sn}, v{P+i}"]
        return [f"v_fmac_f32 v{sp}, v{vLF}, v{E+i}", f"v_fmac_f32 v{sn}, v{vLF}, v{P+i}"]

    def featmap(self, tag, outp, outn, wr=None):
        P, E = R16A, R16B
        sp, sn = vU, vU + 2
        g = []
        for i in range(17):
            if i < 16:
                g += [f"v_exp_f32 v{E+i}, v{P+i}", f"v_exp_f32_e64 v{P+i}, -v{P+i}"]
            if i >= 1:
                g += self.fm_sums(P, E, i - 1)
        g += [f"v_permlane32_swap_b32 v{sp}, v{sn}",
              f"v_add_f32 v{sp}, v{sp}, v{sn}"]
        chk = (f"v_subrev_u32 v{sn}, {hex(f2u(2.0**-60))}, v{sp}\n"
               f"v_cmp_lt_u32 vcc, {hex(f2u(2.0**120) - f2u(2.0**-60))}, v{sn}\n")
        if self.o.get("force_slow"):
            chk += "s_mov_b64 vcc, -1\n"
        chk += f"s_cbranch_vccnz L_fms_{tag}\nL_fmr_{tag}:"
        g += [chk, f"v_rcp_f32 v{vB}, v{sp}", f"v_mov_b32 v{vB+1}, v{vB}",
              f"v_permlane32_swap_b32 v{vB}, v{vB+1}"]
        for ft, (src, dst) in enumerate(((E, outp), (P, outn))):
            for m in range(4):
                g += [f"v_mul_f32 v{src+4*m+i}, v{vB+ft}, v{src+4*m+i}" for i in range(4)]
                g += [f"v_cvt_pk_bf16_f32 v{dst+2*m+i}, v{src+4*m+2*i}, v{src+4*m+2*i+1}" for i in range(2)]
                if wr:
                    g.append(wr(ft, m, dst + 2 * m))
            if not wr:
                g += self.zero_pad(dst)
        return g

    def fm_slow(self, tag):
        k = self.k
        P, E = R16A, R16B
        t = vU
        mx, mn = t, t + 1
        k(f"L_fms_{tag}:")
        k(*self.pmfma())
        for i in range(4):
            k(f"v_bfi_b32 v{P+12+i}, v{vLO}, v{P+12+i}, v{P+8}")
        k(f"v_max3_f32 v{mx}, v{P}, v{P+1}, v{P+2}", f"v_min3_f32 v{mn}, v{P}, v{P+1}, v{P+2}")
        for i in range(6):
            k(f"v_max3_f32 v{mx}, v{mx}, v{P+3+2*i}, v{P+4+2*i}", f"v_min3_f32 v{mn}, v{mn}, v{P+3+2*i}, v{P+4+2*i}")
        k(f"v_max_f32 v{mx}, v{mx}, v{P+15}", f"v_min_f32 v{mn}, v{mn}, v{P+15}",
          f"v_mov_b32 v{t+2}, v{mx}", f"v_mov_b32 v{t+3}, v{mn}",
          f"v_permlane32_swap_b32 v{mx}, v{t+2}", f"v_permlane32_swap_b32 v{mn}, v{t+3}",
          f"v_max_f32 v{vB}, v{mx}, v{t+2}", f"v_min_f32 v{vB+1}, v{mn}, v{t+3}")
        for i in range(16):
            k(f"v_sub_f32 v{E+i}, v{P+i}, v{vB}", f"v_sub_f32 v{P+i}, v{vB+1}, v{P+i}")
        for i in range(16):
            k(f"v_exp_f32 v{E+i}, v{E+i}", f"v_exp_f32 v{P+i}, v{P+i}")
        for i in range(16):
            k(*self.fm_sums(P, E, i))
        k(f"v_permlane32_swap_b32 v{t}, v{t+2}", f"v_add_f32 v{t}, v{t}, v{t+2}")
        k(f"s_branch L_fmr_{tag}")

    def branch_a(self):
        k = self.k
        P, E = R16A, R16B

        pmfma = self.pmfma

        def scale_pack():
            g = []
            for i in range(8):
                g += [f"v_mul_f32 v{ACA+2*i}, v{vC}, v{ACA+2*i}", f"v_mul_f32 v{ACA+2*i+1}, v{vC}, v{ACA+2*i+1}"]
                if i >= 1:
                    g.append(f"v_cvt_pk_bf16_f32 v{F8+i-1}, v{ACA+2*i-2}, v{ACA+2*i-1}")
            return g + [f"v_cvt_pk_bf16_f32 v{F8+7}, v{ACA+14}, v{ACA+15}"] + self.zero_pad(F8)
        PWR = [vPW, 2, 3, 6, 7, 8, 9, 159]
        W2V = self.o.get("aw2b", 0)
        w2 = lambda i: ({3: [lambda: self.dma_w2(1, i)]} if W2V else {})
        xo = [f"v_xor_b32 v{PWR[q]}, {q*16}, v{vPW}" for q in range(1, 8)]
        self.gemm_step(7, bg=scale_pack() + pmfma(), w=(0, 0, 1, 1), mem={1: [lambda: k(*xo)], **w2(0)})
        self.stamp()
        wr = lambda ft, m, src: f"ds_write_b64 v{PWR[ft*4+m]}, {vr(src,2)} offset:{L_PHI}"
        allbg = self.featmap("k", F8, E, wr)
        NS = 6
        cost = [sum(2 if ("exp" in l or "rcp" in l or "ds_" in l) else 1 for l in x.split("\n")) for x in allbg]
        tot = sum(cost); parts = [[] for _ in range(NS)]; acc = 0
        for x, c in zip(allbg, cost):
            parts[min(NS - 1, acc * NS // tot)].append(x); acc += c
        KW = self.o.get("kvw", 0)
        for s in range(8, 14):
            self.gemm_step(s, bg=parts[s - 8], end=[self.ann_check] if s == self.ann_check_step() else [],
                           flush=(s == 13), mem=w2(s - 7))
        QE = self.o.get("qearly", 1)
        if QE:
            self.manual_units = [u for u in range(7, 14) if u not in self.toku]
            for u in self.manual_units[:-1]:
                self.dma_unit(u)
        VP_ = P
        k(f"s_mov_b32 s{SRD_Z}, s{SRD_WS}", f"s_mov_b32 s{SRD_Z+1}, s{SRD_WS+1}", f"s_cmp_eq_u32 s{sHH}, {KW//4}",
          f"s_cselect_b32 s{SRD_Z+2}, {WS_BYTES}, 0")
        for h in range(2):
            k(*[f"v_cvt_pk_bf16_f32 v{VP_+i}, v{ACB+2*i}, v{ACB+2*i+1}" for i in range(4 * h, 4 * h + 4)])
            k(*[f"v_bfi_b32 v{VP_+i}, v{vM28}, s{sONES}, v{VP_+i}" for i in range(4 * h, 4 * h + 4)])
            k(f"ds_write_b128 v{vVFW}, {vr(VP_+4*h,4)} offset:{L_VF+1024*h}")
        k("s_waitcnt lgkmcnt(0)")
        k("s_barrier")
        self.stamp()
        k(f"s_cmp_eq_u32 s{sHH}, {KW//4}")
        k("s_cbranch_scc0 L_nokv")
        st = k.state()
        toks = []

        def rd(n):
            b = (n % 4) * 4
            k(f"ds_read_b64_tr_b16 {vr(P+b,2)}, v{vA1} offset:{L_PHI + n*2048}")
            k(f"ds_read_b64_tr_b16 {vr(P+b+2,2)}, v{vA2} offset:{L_PHI + n*2048 + 1024}")
            toks.append(k(f"ds_read_b128 {vr(E+b,4)}, v{vA3} offset:{L_VF + n*1024}"))
        for n in range(4):
            rd(n)
        for n in range(8):
            k.wait(lg=toks[n])
            b = (n % 4) * 4
            k(f"v_mfma_f32_32x32x16_bf16 {vr(ACB,16)}, {vr(P+b,4)}, {vr(E+b,4)}, {'0' if n == 0 else vr(ACB,16)}")
            if n + 4 < 8:
                rd(n + 4)
        k("L_nokv:")
        k.restore(st)
        for h in range(2):
            k(*[f"v_cvt_pk_bf16_f32 v{F8+i}, v{ACB+2*i}, v{ACB+2*i+1}" for i in range(4 * h, 4 * h + 4)])
            tokpart = k(f"buffer_store_dwordx4 {vr(F8+4*h,4)}, v{vL16}, {srd(SRD_Z)}, s{sKV} offen offset:{1024*h} sc1")
        PF = self.o.get("pflag", 17)
        W2Q = self.o.get("aw2q", 1)
        for s in range(14, 21):
            kw = {}
            mem = {0: [], 1: [], 2: [], 3: []}
            if s == 14 and QE:
                mem[1].append(lambda: self.dma_unit(13))
            if s == PF:
                kw["extra_vm"] = tokpart
                mem[0].append(lambda: self.set_flag(WS_F1))
            if W2Q:
                mem[2].append(lambda s=s: self.dma_w2(1, s - 14))
                if s >= 15:
                    mem[3].append(lambda s=s: self.dma_w2(0, s - 15, rot=False))
            self.gemm_step(s, noold=(s == 14), flush=(s == 20), mem=mem, **kw)
        self.manual_units = ()
        self.stamp()
        k(f"v_mul_f32 v{vG}, {hex(f2u(-LOG2E))}, v{ACA+12}")
        k(*scale_pack())
        k(*pmfma())
        k(f"v_exp_f32 v{vG}, v{vG}")
        k(f"v_add_f32 v{vG}, 1.0, v{vG}")
        ST = 48
        self.poll_one(1)
        k("s_barrier")
        self.stamp()
        PHP, PHN = 16, 24
        fq = self.featmap("q", PHP, PHN)
        toks = []
        NA = self.o.get("pahead", 4)

        def ldP(t):
            if t % 4 == 0:
                if self.o.get("prot", 1):
                    k(f"s_add_u32 s{sT2}, s{sTB}, {t//4}", f"s_and_b32 s{sT2}, s{sT2}, 3")
                else:
                    k(f"s_mov_b32 s{sT2}, {t//4}")
                k(f"s_lshl_b32 s{sT2}, s{sT2}, 14", f"s_add_u32 s{sT2}, s{sT2}, s{sKL}")
            else:
                k(f"s_add_u32 s{sT2}, s{sT2}, 4096")
            toks.append(k(f"buffer_load_dwordx4 {vr(ST+4*t,4)}, v{vL16}, {srd(SRD_WS)}, s{sT2} offen sc1"))
        for t in range(NA):
            ldP(t)
        n0 = int(len(fq) * self.o.get("pq0", 40) / 100)
        k(*fq[:n0])
        rest = fq[n0:]
        NI = self.o.get("pqn", 10)
        per = -(-len(rest) // NI)
        self.stamp()
        for t in range(16):
            k.wait(vm=toks[t])
            k(f"v_mfma_f32_32x32x16_bf16 {vr(ACB,16)}, {vr(SEL,4)}, {vr(ST+4*t,4)}, {'0' if t == 0 else vr(ACB,16)}")
            if t + NA < 16:
                ldP(t + NA)
            if t < NI and rest[t * per:(t + 1) * per]:
                k(*rest[t * per:(t + 1) * per])
        if W2Q:
            self.dma_w2(0, 6, rot=False)
        for i in range(4):
            k(f"v_cvt_pk_bf16_f32 v{F8+i}, v{ACB+2*i}, v{ACB+2*i+1}")
        k(f"ds_write_b128 v{vKX0}, {vr(F8,4)} offset:{L_KVX}")
        k("s_waitcnt lgkmcnt(0)")
        k("s_barrier")
        toks = [k(f"ds_read_b128 {vr(ST+4*n,4)}, v{vKX1} offset:{L_KVX + n*1024}") for n in range(4)]
        for n in range(4):
            k.wait(lg=toks[n])
            k(f"v_mfma_f32_32x32x16_bf16 {vr(ACA,16)}, {vr(ST+4*n,4)}, {vr(PHP+4*n,4)}, {'0' if n == 0 else vr(ACA,16)}")
        self.stamp()
        self.o_epilogue(ACA, True)

    def final_stage(self, isb):
        k = self.k
        tokO = ("vm", k.nvm)
        l = self.lab("fin")
        k(f"s_cmp_ge_u32 s2, 224")
        k(f"s_cbranch_scc0 {l}")
        k("s_waitcnt vmcnt(0) ; spin")
        k("s_barrier")
        st = k.state()
        self.set_flag(WS_F3)
        k.restore(st)
        k("s_endpgm ; spin")
        k(f"{l}:")
        assert self.o.get("w2b_early", 1) and self.o.get("aw2q", 1)
        k(f"s_waitcnt vmcnt(2)")
        k("s_barrier")

    def final_addr(self):
        k = self.k
        AA = 16
        k(f"v_bfe_u32 v{vT0}, v{vL}, 2, 2")
        k(f"v_bfe_u32 v{vT1}, v{vL}, 4, 1")
        k(f"v_lshl_add_u32 v{vT0}, v{vT1}, 2, v{vT0}")
        k(f"v_lshrrev_b32 v{vT1}, 1, v{vT0}")
        k(f"s_lshl_b32 s{sT0}, s{sHH}, 1")
        k(f"v_xor_b32 v{vT1}, s{sT0}, v{vT1}")
        k(f"v_lshrrev_b32 v{vT2}, 5, v{vL}")
        k(f"v_lshl_add_u32 v{vT0}, v{vT2}, 4, v{vT0}")
        k(f"v_lshlrev_b32 v{vT0}, 7, v{vT0}")
        k(f"v_lshl_add_u32 v{vT0}, v{vT1}, 5, v{vT0}")
        k(f"v_and_b32 v{vT1}, 3, v{vL}")
        k(f"v_lshl_add_u32 v{vT0}, v{vT1}, 3, v{vT0}")
        k(f"s_mul_i32 s{sT0}, s{sHH}, {8*3584}")
        k(f"s_add_u32 s{sT0}, s{sT0}, {L_W2A}")
        k(f"v_add_u32 v{AA}, s{sT0}, v{vT0}")
        for j in range(1, 4):
            k(f"v_xor_b32 v{AA+j}, {32*j}, v{AA}")
        k(f"v_add_u32 v{vT0}, 16, v{vL}")
        k(f"v_lshrrev_b32 v{vT0}, 6, v{vT0}")
        k(f"v_lshlrev_b32 v{vT0}, 10, v{vT0}")
        for j in range(4):
            k(f"v_sub_u32 v{AA+4+j}, v{AA+j}, v{vT0}")
        vO = 2
        k(f"v_and_b32 v{vT0}, 15, v{vL}")
        k(f"v_lshrrev_b32 v{vT1}, 4, v{vL}")
        k(f"v_lshlrev_b32 v{vT0}, 4, v{vT0}")
        k(f"v_lshl_add_u32 v{vO}, v{vT1}, 9, v{vT0}")
        k(f"s_lshl_b32 s{sT0}, s{sRB}, 1")
        k(f"s_lshr_b32 s{sT1}, s{sTT}, 1")
        k(f"s_add_u32 s{sT2}, s{sT0}, s{sT1}")
        k(f"s_lshl_b32 s{sT0}, s{sT2}, 16")
        k(f"s_and_b32 s{sT1}, s{sTT}, 1")
        k(f"s_lshl_b32 s{sT1}, s{sT1}, 8")
        k(f"s_add_u32 s{sT0}, s{sT0}, s{sT1}")
        k(f"s_lshl_b32 s{sT1}, s{sHH}, 14")
        k(f"s_add_u32 s{sT0}, s{sT0}, s{sT1}")
        k(f"s_add_u32 s{sDONE}, s{sT0}, {WS_O}")
        for q in range(4):
            if self.o.get("split", 0):
                k(f"s_and_b32 s{sT0}, s{sCB}, {self.o.get('frot', 1)}", f"s_xor_b32 s{sT0}, s{sT0}, {q ^ (2 * self.o.get('first', 0))}")
            else:
                k(f"s_add_u32 s{sT0}, s{sCB}, {q}", f"s_and_b32 s{sT0}, s{sT0}, 3")
            k(f"s_and_b32 s{sT1}, s{sT0}, 1", f"s_lshr_b32 s{sT0}, s{sT0}, 1",
              f"s_lshl_b32 s{sXO+q}, s{sT0}, 15", f"s_lshl_b32 s{sT3}, s{sT1}, 13", f"s_add_u32 s{sXO+q}, s{sXO+q}, s{sT3}",
              f"s_add_u32 s{sXO+q}, s{sXO+q}, s{sDONE}",
              f"s_mul_i32 s{sT1}, s{sT1}, {4*3584}", f"s_mul_i32 s{sT0}, s{sT0}, {L_W2A - L_W2B}",
              f"s_sub_u32 s{sWO+q}, s{sT1}, s{sT0}")
        for q in (3, 2, 1):
            k(f"s_sub_u32 s{sWO+q}, s{sWO+q}, s{sWO+q-1}")
        sp = self.o.get("split", 0)
        k(f"v_and_b32 v{vT0}, {7 if sp else 15}, v{vL}")
        k(f"v_lshlrev_b32 v{vT0}, 11, v{vT0}")
        k(f"s_lshr_b32 s{sT0}, s{sRB}, 1")
        k(f"s_lshl_b32 s{sT0}, s{sT0}, 7")
        k(f"s_add_u32 s{sT0}, s{sT0}, {WS_F3 + (16384 * self.o.get('first', 0) if sp else 0)}")
        k(f"v_add_u32 v{vPOLL}, s{sT0}, v{vT0}")
        vE0, vE1, vOA = 3, 4, 5
        k(f"v_add_u32 v{vE0}, s{sW2K}, v{vL16}")
        k(f"v_add_u32 v{vE0}, {L_EX}, v{vE0}")
        k(f"v_xor_b32 v{vE1}, 8192, v{vE0}")
        k(f"v_and_b32 v{vOA}, 15, v{vL}")
        k(f"s_lshl_b32 s{sT0}, s{sRB}, 6")
        k(f"s_lshl_b32 s{sT1}, s{sTT}, 4")
        k(f"s_add_u32 s{sT0}, s{sT0}, s{sT1}")
        k(f"v_add_u32 v{vOA}, s{sT0}, v{vOA}")
        k(f"v_mul_u32_u24 v{vOA}, 896, v{vOA}")
        k(f"v_bfe_u32 v{vT0}, v{vL}, 4, 1")
        k(f"v_lshl_add_u32 v{vOA}, v{vT0}, 5, v{vOA}")
        k(f"v_lshrrev_b32 v{vT0}, 5, v{vL}")
        k(f"v_lshl_add_u32 v{vOA}, v{vT0}, 4, v{vOA}")
        k(f"s_lshl_b32 s{sT0}, s{sCB}, 7")
        k(f"s_lshl_b32 s{sT1}, s{sHH}, 6")
        k(f"s_add_u32 s{sT0}, s{sT0}, s{sT1}")
        k(f"v_add_u32 v{vOA}, s{sT0}, v{vOA}")

    def final_gemm(self):
        k = self.k
        AA = 16; vO = 2; vE0, vE1, vOA = 3, 4, 5
        OF = lambda n: 32 + 4 * (n % 8)
        ACC = 64
        WB = lambda n: 208 if n % 8 == 7 else 80 + 16 * (n % 8)
        tw = {}

        def rdW(n, jjs=range(4)):
            q, i = divmod(n, 4)
            if i == 0 and jjs[0] == 0:
                for j in range(8):
                    k(f"v_add_u32 v{AA+j}, s{sWO+q}, v{AA+j}")
            for jj in jjs:
                a = AA + (jj ^ (2 * (i & 1)))
                d = WB(n) + 4 * jj
                k(f"ds_read_b64_tr_b16 {vr(d,2)}, v{a} offset:{i*3584}")
                tw[n] = k(f"ds_read_b64_tr_b16 {vr(d+2,2)}, v{a+4} offset:{i*3584+1024}")
        self.final_addr()
        NPRE = self.o.get("wpre", 4)
        for n in range(NPRE):
            rdW(n)
        k("s_waitcnt vmcnt(0)")
        k("s_barrier")
        self.set_flag(WS_F3)
        self.stamp()
        for n in range(NPRE, 8):
            rdW(n)
        self.poll_one(1)
        k("s_barrier")
        self.stamp()
        toks = []

        def ldO(n):
            q, i = divmod(n, 4)
            if i == 2:
                k(f"s_add_u32 s{sXO+q}, s{sXO+q}, 4096")
            toks.append(k(f"buffer_load_dwordx4 {vr(OF(n),4)}, v{vO}, {srd(SRD_WS)}, s{sXO+q} offen offset:{(i%2)*2048} sc1"))
        NA = self.o.get("oahead", 4)
        sp = self.o.get("split", 0)
        for n in range(NA):
            ldO(n)
        for n in range(16):
            if sp and n == 8:
                k(f"v_xor_b32 v{vPOLL}, 16384, v{vPOLL}")
                self.poll_one(1)
                k("s_barrier")
                self.stamp()
                for m in range(self.o.get("oahead2", NA)):
                    ldO(8 + m)
            k.wait(vm=toks[n], lg=tw[n] if n >= 8 else None)
            if n == 0:
                k("s_waitcnt lgkmcnt(0)")
            for jj in range(4):
                k(f"v_mfma_f32_16x16x32_bf16 {vr(ACC+4*jj,4)}, {vr(WB(n)+4*jj,4)}, {vr(OF(n),4)}, {'0' if n == 0 else vr(ACC+4*jj,4)}")
                if jj == 0 and len(toks) < (8 if (sp and n < 8) else 16):
                    ldO(len(toks))
                if jj >= 1 and n + 8 < 16:
                    rdW(n + 8, [jj - 1] if jj < 3 else [2, 3])
        self.stamp()
        k(f"ds_write_b128 v{vE0}, {vr(ACC+8,4)}")
        k(f"ds_write_b128 v{vE0}, {vr(ACC+12,4)} offset:1024")
        k("s_waitcnt lgkmcnt(0)")
        k("s_barrier")
        k(f"ds_read_b128 {vr(ACC+8,4)}, v{vE1}")
        k(f"ds_read_b128 {vr(ACC+12,4)}, v{vE1} offset:1024")
        k("s_waitcnt lgkmcnt(0)")
        for i in range(8):
            k(f"v_add_f32 v{ACC+i}, v{ACC+i}, v{ACC+8+i}")
        for i in range(4):
            k(f"v_cvt_pk_bf16_f32 v{ACC+8+i}, v{ACC+2*i}, v{ACC+2*i+1}")
        k(f"v_permlane16_swap_b32 v{ACC+8}, v{ACC+10}")
        k(f"v_permlane16_swap_b32 v{ACC+9}, v{ACC+11}")
        k(f"buffer_store_dwordx4 {vr(ACC+8,4)}, v{vOA}, {srd(SRD_O)}, 0 offen {['', 'sc1', 'nt', 'sc1 nt'][self.o.get('osc', 1)]}")

    def write_stamps(self):
        if not self.o.get("stamps"):
            return
        k = self.k
        self.stamp()
        k("s_waitcnt vmcnt(0)")
        self.stamp()
        k(f"s_memrealtime s[{sT2}:{sT2+1}]")
        k("s_waitcnt lgkmcnt(0)")
        if "diag" in self.o:
            n = self.o["diag"]
            if n >= 0:
                base = 101 if "diag0" not in self.o else STAMP_REGS[self.o["diag0"]]
                k(f"s_sub_u32 s{sT0}, s{STAMP_REGS[n]}, s{base}")
                if "diagbr" in self.o:
                    k(f"s_cmp_eq_u32 s{sBR}, {self.o['diagbr']}")
                    k(f"s_cselect_b32 s{sT0}, s{sT0}, 0")
                k(f"s_lshl_b32 s{sT0}, s{sT0}, 1")
                k(f"s_min_u32 s{sT0}, s{sT0}, 10000")
                k(f"s_add_u32 s{sT0}, s{sT0}, s{sT2}")
                k("L_diag:")
                k(f"s_memrealtime s[{sT2}:{sT2+1}]")
                k("s_waitcnt lgkmcnt(0)")
                k(f"s_sub_u32 s{sT1}, s{sT2}, s{sT0}")
                k(f"s_cmp_lt_i32 s{sT1}, 0")
                k("s_cbranch_scc1 L_diag")
            return
        k(f"s_lshl_b32 s{sT0}, s2, 3")
        k(f"s_add_u32 s{sT0}, s{sT0}, s{sW_}")
        k(f"s_lshl_b32 s{sT0}, s{sT0}, 6")
        k(f"s_add_u32 s{sT0}, s{sT0}, {WS_STAMP}")
        k("s_mov_b64 exec, 1")
        k("v_mov_b32 v1, 0")
        assert self.nstamp <= 14
        for n in range(self.nstamp):
            k(f"s_sub_u32 s{sT1}, s{STAMP_REGS[n]}, s{101 if self.o['stamps'] == 2 else 100}")
            k(f"v_mov_b32 v2, s{sT1}")
            k(f"buffer_store_dword v2, v1, {srd(SRD_WS)}, s{sT0} offen offset:{4*n}")
        k(f"v_mov_b32 v2, s101")
        k(f"v_mov_b32 v3, s{sT2}")
        k(f"buffer_store_dwordx2 v[2:3], v1, {srd(SRD_WS)}, s{sT0} offen offset:56")

    def kernel_main(self):
        k = self.k
        self.prologue()
        self.common_steps()
        k(f"s_cmp_eq_u32 s{sBR}, 0")
        k("s_cbranch_scc0 L_branch_b")
        st = k.state(); ns = self.nstamp; tku = dict(self.toku)
        self.branch_a()
        self.final_stage(False)
        na = self.nstamp
        k("s_branch L_join")
        k("L_branch_b:")
        k.restore(st); self.nstamp = ns; self.toku = tku
        self.branch_b()
        self.final_stage(True)
        assert na == self.nstamp
        k("L_join:")
        self.final_gemm()
        self.write_stamps()
        k("s_endpgm")
        self.slow_path()
        self.fm_slow("k")
        self.fm_slow("q")


HEADER = open("cdna_kernels/" + NAME + ".s.ref").read().split("; Override")[0]


def desc(name, vg=256):
    return f""".amdhsa_kernel {name}
  .amdhsa_next_free_vgpr {vg}
  .amdhsa_next_free_sgpr 102
  .amdhsa_accum_offset {vg}
  .amdhsa_group_segment_fixed_size 0
  .amdhsa_kernarg_size 88
  .amdhsa_user_sgpr_count 2
  .amdhsa_user_sgpr_kernarg_segment_ptr 1
  .amdhsa_system_sgpr_workgroup_id_x 1
.end_amdhsa_kernel
"""


def finish(g, verbose=False):
    n = g.k.pad_hazards(verbose)
    errs = g.k.check_waits()
    for e in errs[:10]:
        print("WAIT?", e, file=sys.stderr)
    return g.k.text(), n


def build(opt):
    g = Gen(opt)
    g.kernel_main()
    body, n = finish(g, opt.get("verbose"))
    kn = NAME + "_kernel"
    out = HEADER
    out += f"; @launch grid=(256,1,1) block=(512,1,1) lds={L_TOTAL}\n"
    out += '.amdgcn_target "amdgcn-amd-amdhsa--gfx950"\n.text\n'
    out += f".globl {kn}\n.p2align 8\n.type {kn},@function\n{kn}:\n" + body + "L_code_end:\n"
    if opt.get("warm") or opt.get("swarm"):
        out += f".set CODE_BYTES, L_code_end - {kn} - 1024\n"
    out += '.section .rodata,"a"\n.p2align 6\n' + desc(kn)
    return out


if __name__ == "__main__":
    opt = {}
    path = "cdna_kernels/" + NAME + ".s"
    for a in sys.argv[1:]:
        if "=" in a:
            kk, v = a.split("=")
            if kk == "out":
                path = v
            else:
                opt[kk] = int(v)
    open(path, "w").write(build(opt))
    print("wrote", path)
```

```python
import sys, struct
sys.path.insert(0, "tools")
from asmdsl import K, I

NAME = "gated_mix__linear_kernel_hedgehog__sliding_block__prompt"


def f2u(x):
    return struct.unpack("<I", struct.pack("<f", x))[0]


LOG2E = 1.4426950408889634
CSC = LOG2E * (28 ** -0.5)

WS_F1 = 0
WS_F3 = 0x8000
WS_F2 = 0x10000 - 0x4000
NFLAG = 640
WS_STAMP = 0x40000
WS_KB = 0x100000
WS_VB = 0x300000
TILE = 28672
WS_PART = 0x500000
WS_O = 0x600000
WS_BYTES = 0xA00000

L_X = 0
L_KR = 49152
L_SP = 98304
L_WR = 106496
L_TOTAL = 163840
L_VA = 0
L_KA = 49152
L_QB = 0
L_PHI = 0
L_VF = 32768
L_KVX = 0
L_W2A = L_WR
L_W2B = 49152
L_MSG = 8192
L_EX = 16384

sKL = 1
sW_, sBR, sHP, sTB, sTT, sHH, sROT = 3, 4, 5, 6, 7, 8, 9
sT0, sT1, sT2, sT3 = 10, 11, 12, 13
sW1K, sW2K = 14, 15
SRD_T = 32
sF1, sKV = 38, 39
SRD_X, SRD_W, SRD_WS, SRD_M, SRD_O, SRD_A, SRD_B, SRD_D, SRD_Z = 40, 44, 48, 52, 56, 60, 64, 68, 72
SRD_F = SRD_X
sXO, sWO = 76, 83
sMASK = 90
sONES, sWGL, sCNT, sRB, sCB, sNEG = 92, 93, 94, 95, 96, 97
sW2B = 98
sK1K = 99
sKM = 0
STAMP_REGS = [16, 24, 30, 20, 18, 22, 26, 28, 36, 32, 34, 76, 78, 80]

vL = 0
vX0, vX1, vWK, vWV, vWQ = 1, 2, 3, 4, 5
vXR = 6
vWR = 10
vLO = 11
vL16 = 12
vT0, vT1, vT2 = 13, 14, 15
X = 16
WF = 128
ACA, ACB = 160, 176
vG, vGR, vP2, vTA = 192, 193, 194, 195
vB = 196
vPOLL, vGA = 198, 199
F8 = 200
R16A, R16B = 208, 224
WPH = 240
vU = 248
vPV, vFV = 254, 255
vD2 = 1
vL128 = 193
vFA, vFB, vFO, vFP, vFS = 6, 7, 8, 9, 2
vPW, vA1, vA2, vA3, SEL, vKX0, vKX1, vVFW, vPA, vLF, vC = 144, 145, 146, 147, 148, 152, 153, 154, 155, 156, 157
vWRV, vWRQ, vVS = 4, 196, 197
vK0, vK1, vVA, vMA, vMB = 252, 253, 251, 250, 249
QPOS = [2, 3, 4, 5, 0, 1, 6]
ONE = 156


def srd(n):
    return f"s[{n}:{n+3}]"


def vr(a, n=1):
    return f"v{a}" if n == 1 else f"v[{a}:{a+n-1}]"


def cost(x):
    return sum(2 if ("exp" in l or "rcp" in l or "mfma" in l or "ds_" in l) else 1 for l in x.split("\n"))


def split_by_cost(items, weights):
    tot = sum(cost(x) for x in items)
    cum = [sum(weights[:i + 1]) / sum(weights) * tot for i in range(len(weights))]
    out = [[] for _ in weights]
    acc = 0
    for x in items:
        last = max(j for j in range(len(weights)) if weights[j])
        i = min(j for j in range(len(weights)) if acc < cum[j] - 1e-9 or j == last)
        out[i].append(x); acc += cost(x)
    return out


class Gen:
    def __init__(self, opt):
        self.o = opt
        self.k = K()
        self.nstamp = 0
        self.uid = 0
        self.defer = []
        self.cold = []

    @property
    def SO(self):
        return self.o.get("so", 2048)

    @property
    def SP(self):
        return self.o.get("spp", 2048)

    def opt(self, name, default):
        return self.o.get(name, default)

    def stamp(self, step=None):
        if not self.o.get("stamps") or self.o["stamps"] == 3:
            return
        ss = self.o.get("ss")
        if ss is None and step is not None:
            return
        if ss is not None and (step is None or not ss <= step < ss + self.o.get('sn', 9)):
            return
        r = STAMP_REGS[self.nstamp]
        self.k(f"{'s_memrealtime' if self.o['stamps'] == 2 else 's_memtime'} s[{r}:{r+1}]")
        self.nstamp += 1

    def lab(self, s):
        self.uid += 1
        return f"L_{s}_{self.uid}"

    def mk(self, d, p, nbytes):
        self.k(f"s_mov_b32 s{d}, s{p}", f"s_mov_b32 s{d+1}, s{p+1}", f"s_mov_b32 s{d+2}, {nbytes}", f"s_mov_b32 s{d+3}, 0x20000")

    def rare(self, br, body):
        l = self.lab("r")
        self.k(f"{br} {l}")
        self.k(f"{l}b:")
        self.cold.append((l, body))

    def emit_cold(self):
        k = self.k
        while self.cold:
            l, body = self.cold.pop(0)
            st = k.state()
            k(f"{l}:")
            body()
            k(f"s_branch {l}b")
            k.restore(st)

    def page(self, name, jump=True):
        if not self.opt("visit", 2):
            return
        k = self.k
        if jump:
            k(f"s_branch L_pg_{name}_go ; spin")
        k(".p2align 12")
        for who in name.split("_")[0] if self.opt("visit", 2) == 1 else "":
            k(f"L_pg_{name}_{who}:")
            k(f"s_branch L_vis_{who} ; spin")
        k(f"L_pg_{name}_go:")

    def visits(self, who, names):
        if self.opt("visit", 2) != 1:
            return
        k = self.k
        for i, n in enumerate(names):
            k(f"s_cmp_eq_u32 s{sW_}, {i + self.opt('visw', 0)}")
            k(f"s_cbranch_scc1 L_pg_{n}_{who}")
        k(f"L_vis_{who}:")

    def entry(self):
        k = self.k
        k("s_load_dwordx16 s[16:31], s[0:1], 0")
        if self.opt("pre", 1):
            k("s_getpc_b64 s[12:13]")
            k("L_pc:")
            k(f"s_and_b32 s{sT0}, s2, 0xf8")
            k(f"v_add_lshl_u32 v{vT1}, s{sT0}, v0, 7")
            k(f"v_cmp_gt_u32 vcc, 8, v0")
            k(f"v_min_u32 v{vT1}, CODE_BYTES, v{vT1}")
            k(f"s_and_saveexec_b64 s[{sT0}:{sT0+1}], vcc")
            k("s_cbranch_execz L_nopre")
            k.uncounted(f"global_load_dword v{vFV}, v{vT1}, s[12:13] ; spin")
            k("L_nopre:")
            k("s_mov_b64 exec, -1")
        k("s_load_dwordx4 s[32:35], s[0:1], 64")
        k("s_load_dwordx2 s[36:37], s[0:1], 80")
        k("s_cmp_ge_u32 s2, 256")
        k("s_cbranch_scc1 L_exit")
        if self.o.get("stamps"):
            k("s_memtime s[100:101]")
            k("s_memrealtime s[98:99]")
        k(f"v_lshrrev_b32 v{vT0}, 6, v0")
        k(f"v_and_b32 v{vL}, 63, v0")
        k(f"v_readfirstlane_b32 s{sW_}, v{vT0}")
        XM = self.opt("xmap", 0)
        if XM == 0:
            if self.opt("xinv", 0):
                k(f"s_andn2_b32 s{sBR}, 1, s2")
            else:
                k(f"s_and_b32 s{sBR}, s2, 1")
        else:
            k(f"s_bfe_u32 s{sBR}, s2, 0x10002")
            if XM == 1:
                k(f"s_xor_b32 s{sBR}, s{sBR}, 1")
        k(f"s_bfe_u32 s{sT0}, s2, {'0x10001' if XM == 0 else '0x10000'}")
        k(f"s_bfe_u32 s{sT1}, s2, 0x10005")
        k(f"s_bfe_u32 s{sHP}, s2, 0x20003")
        k(f"s_lshr_b32 s{sT2}, s2, 6")
        k(f"s_cmp_eq_u32 s{sBR}, 0")
        k(f"s_cselect_b32 s{sT3}, s{sT0}, s{sT1}")
        k(f"s_cselect_b32 s{sT0}, s{sT1}, s{sT0}")
        k(f"s_cselect_b32 s{sROT}, s{sHP}, s{sT2}")
        k(f"s_cselect_b32 s{sT1}, s{sT1}, s{sT3}")
        k(f"s_add_u32 s{sROT}, s{sROT}, s{sHP}")
        k(f"s_add_u32 s{sROT}, s{sROT}, s{sT2}")
        k(f"s_lshl2_add_u32 s{sROT}, s{sT1}, s{sROT}")
        k(f"s_and_b32 s{sT1}, s{sT0}, s{sBR}")
        k(f"s_add_u32 s{sROT}, s{sROT}, s{sT1}")
        k(f"s_lshl2_add_u32 s{sHP}, s{sT3}, s{sHP}")
        k(f"s_lshl2_add_u32 s{sTB}, s{sT0}, s{sT2}")
        if XM == 0:
            k(f"s_and_b32 s{sT0}, s2, 4")
            k(f"s_lshl1_add_u32 s{sTB}, s{sT0}, s{sTB}")
        else:
            k(f"s_and_b32 s{sT0}, s2, 2")
            k(f"s_lshl2_add_u32 s{sTB}, s{sT0}, s{sTB}")
        if self.opt("tinv", 0):
            k(f"s_xor_b32 s{sTB}, s{sTB}, {self.opt('tinv', 0)}")
        k(f"s_mul_i32 s{sT0}, s{sROT}, 37")
        k(f"s_lshr_b32 s{sT0}, s{sT0}, 8")
        k(f"s_mul_i32 s{sT0}, s{sT0}, 7")
        k(f"s_sub_u32 s{sROT}, s{sROT}, s{sT0}")
        k(f"s_lshl_b32 s{sXO}, s{sROT}, 7")
        k(f"s_lshl_b32 s{sW2K}, s{sW_}, 11")
        k(f"v_lshrrev_b32 v{vT0}, 3, v{vL}")
        k(f"v_and_b32 v{vT1}, 7, v{vL}")
        k(f"v_lshrrev_b32 v{vT2}, 4, v{vL}")
        k(f"v_xor_b32 v{vT2}, v{vT2}, v{vT1}")
        k(f"s_lshl3_add_u32 s{sT0}, s{sTB}, s{sW_}")
        k(f"s_lshl_b32 s{sT0}, s{sT0}, 4")
        k(f"v_add_u32 v{vX0}, s{sT0}, v{vT0}")
        k(f"v_mul_u32_u24 v{vX0}, 896, v{vX0}")
        k(f"v_lshl_add_u32 v{vX0}, v{vT2}, 4, v{vX0}")
        k(f"s_mov_b32 s{SRD_X+2}, {2048*896}", f"s_mov_b32 s{SRD_X+3}, 0x20000")
        k(f"s_mov_b32 m0, s{sW2K}")
        k("s_waitcnt lgkmcnt(0)")
        k(f"s_mov_b32 s{SRD_X}, s16", f"s_mov_b32 s{SRD_X+1}, s17")
        self.tokx = {}
        self.toku = {}
        k(f"buffer_load_dwordx4 v{vX0}, {srd(SRD_X)}, s{sXO} offen lds")
        k(f"v_xor_b32 v{vX1}, 64, v{vX0}")
        k(f"v_add_u32 v{vX1}, {8*896}, v{vX1}")
        self.dma1(0, 1)
        if self.o.get("stamps"):
            k("s_mov_b32 s101, s98")
        self.stamp(step=-3)
        k(f"s_mul_i32 s{sWO}, s{sROT}, {64*2688}")
        k(f"s_lshl_b32 s{sW1K}, s{sW_}, 10")
        k(f"v_lshlrev_b32 v{vT2}, 1, v{vT0}")
        k(f"v_and_b32 v{vT2}, 4, v{vT2}")
        k(f"v_xor_b32 v{vT2}, v{vT2}, v{vT1}")
        k(f"v_and_b32 v{vT1}, 1, v{vT0}")
        k(f"v_xor_b32 v{vT2}, v{vT2}, v{vT1}")
        k(f"s_and_b32 s{sT0}, s{sW_}, 1")
        k(f"s_lshl_b32 s{sT0}, s{sT0}, 1")
        k(f"v_xor_b32 v{vT2}, s{sT0}, v{vT2}")
        k(f"s_lshl_b32 s{sT0}, s{sW_}, 3")
        k(f"v_add_u32 v{vT0}, s{sT0}, v{vT0}")
        k(f"v_mul_u32_u24 v{vT0}, 2688, v{vT0}")
        k(f"s_add_u32 s{sT0}, s{sBR}, 6", f"v_min_u32 v{vT1}, s{sT0}, v{vT2}", f"v_lshl_add_u32 v{vWK}, v{vT1}, 4, v{vT0}")
        k(f"s_lshl4_add_u32 s{sT0}, s{sBR}, 112", f"s_mul_i32 s{sT0}, s{sT0}, s{sHP}", f"s_add_u32 s{sT0}, s{sT0}, 896")
        if self.opt("kflip", 0):
            k(f"s_andn2_b32 s{sT1}, s{sHP}, s{sBR}", f"s_and_b32 s{sT1}, s{sT1}, 1", f"s_lshl_b32 s{sT1}, s{sT1}, 12",
              f"s_xor_b32 s{sK1K}, s{sW1K}, s{sT1}", f"s_sub_u32 s{sT1}, s{sK1K}, s{sW1K}", f"s_mul_i32 s{sT1}, s{sT1}, 21",
              f"s_add_u32 s{sT0}, s{sT0}, s{sT1}")
        else:
            k(f"s_mov_b32 s{sK1K}, s{sW1K}")
        k(f"v_add_u32 v{vWK}, s{sT0}, v{vWK}")
        k(f"s_lshl3_add_u32 s{sWGL}, s{sBR}, s{sHP}", f"s_cmp_eq_u32 s{sWGL}, 15", f"s_cselect_b32 s{SRD_Z+2}, 0, {448*2688}")
        k(f"s_cmp_eq_u32 s{sBR}, 0")
        k(f"s_cselect_b32 s{SRD_Z}, s18, s26", f"s_cselect_b32 s{SRD_Z+1}, s19, s27", f"s_mov_b32 s{SRD_Z+3}, 0x20000")
        self.srdk = SRD_Z
        self.dma1(0, 2)
        if not self.opt("smlate", 0):
            self.small_loads()
        self.mk(SRD_W, SRD_Z, 448 * 2688)
        if self.opt("cpro", 1):
            k(f"v_min_u32 v{vT1}, 6, v{vT2}", f"v_lshl_add_u32 v{vWQ}, v{vT1}, 4, v{vT0}")
            k(f"s_mul_i32 s{sT0}, s{sHP}, 112", f"v_add_u32 v{vWQ}, s{sT0}, v{vWQ}")
            self.setup_early()
            k("s_barrier")
            if self.opt("smlate", 0):
                self.small_loads()
            if self.opt("bv0", 1):
                k(f"s_cmp_eq_u32 s{sBR}, 0")
                k("s_cbranch_scc1 L_x10")
                st = k.state()
                self.dma1(0, 3)
                self.tokv0 = self.toku.pop(0)
                k("s_branch L_x10d ; spin")
                k.restore(st)
                k("L_x10:")
            self.dma1(1, 0)
            k("L_x10d:")
            self.ubase = None
            self.setup_common()
        k(f"s_cmp_eq_u32 s{sBR}, 0")
        k("s_cbranch_scc1 L_path_a" if self.opt("bfirst", 0) else "s_cbranch_scc0 L_path_b")

    def dma1(self, s, part):
        k = self.k
        if part < 2:
            k(f"s_add_u32 m0, s{sW2K}, {L_X + (s % 3) * 16384 + 1024 * part}")
            t = k(f"buffer_load_dwordx4 v{vX0 + part}, {srd(SRD_X)}, s{sXO+s} offen lds")
        elif part == 2:
            k(f"s_add_u32 m0, s{sK1K}, {L_KR + (s % 3) * 16384}")
            t = k(f"buffer_load_dwordx4 v{vWK}, {srd(self.srdk)}, s{sWO+s} offen lds")
        else:
            k(f"s_add_u32 m0, s{sW1K}, {L_WR + s * 8192 - 896}")
            self.toku[s] = k(f"buffer_load_dwordx4 v{vWK}, {srd(self.srdk)}, s{sWO+s} offen offset:896 lds")
            return
        self.tokx[s] = t

    def dma_unit(self, u):
        k = self.k
        j = u % 7
        k(f"s_add_u32 m0, s{sW1K}, {self.ubase + j * 8192 if self.ubase == L_WR else L_SP if j == 6 else L_QB + QPOS[j] * 8192}")
        k(f"s_mov_b64 exec, s[{sMASK}:{sMASK+1}]")
        self.toku[u] = k(f"buffer_load_dwordx4 v{vWV if u < 7 else vWQ}, {srd(SRD_W)}, s{sWO+j} offen lds")
        k("s_mov_b64 exec, -1")

    def dma_w2(self, half, i, rot=True):
        k = self.k
        if rot:
            k(f"s_add_u32 m0, s{sXO+i}, s{sW2B + half}")
            k(f"s_mul_i32 s{sT3}, s{sXO+i}, 7")
        else:
            k(f"s_add_u32 m0, s{sW2B + half}, {i*8192}")
            k(f"s_mov_b32 s{sT3}, {i*64*896}")
        return k(f"buffer_load_dwordx4 v{vD2}, {srd(SRD_B if self.opt('first', 0) else SRD_A)}, s{sT3} offen lds")

    def dma_w2_mid(self, region, i):
        k = self.k
        k(f"s_add_u32 s{sT3}, s{sRB}, {i}", f"s_and_b32 s{sT3}, s{sT3}, 3", f"s_add_u32 s{sT3}, s{sT3}, 3", f"s_lshl_b32 s{sT3}, s{sT3}, 13")
        k(f"s_add_u32 m0, s{sT3}, s{sW2B + region}")
        k(f"s_mul_i32 s{sT3}, s{sT3}, 7")
        return k(f"buffer_load_dwordx4 v{vD2}, {srd(SRD_A if self.opt('first', 0) else SRD_B)}, s{sT3} offen lds")

    def setup_early(self):
        k = self.k
        for j in range(1, 7):
            k(f"s_add_u32 s{sXO+j}, s{sXO+j-1}, 128")
            k(f"s_cmp_eq_u32 s{sXO+j}, 896")
            k(f"s_cselect_b32 s{sXO+j}, 0, s{sXO+j}")
            k(f"s_mul_i32 s{sWO+j}, s{sXO+j}, {64*2688//128}")
        k(f"v_cmp_ne_u32 s[{sMASK}:{sMASK+1}], 7, v{vT2}")
        k(f"s_and_b32 s{sTT}, s{sW_}, 3")
        k(f"s_lshr_b32 s{sHH}, s{sW_}, 2")

    def setup_common(self):
        k = self.k
        self.mk(SRD_WS, 36, WS_BYTES)
        self.mk(SRD_O, 32, 2048 * 896)
        self.mk(SRD_D, 34, 256)
        self.mk(SRD_A, 22, 448 * 896)
        self.mk(SRD_B, 28, 448 * 896)
        k(f"s_lshl4_add_u32 s{sWGL}, s{sWGL}, s{sTB}")
        k(f"s_lshl_b32 s{sF1}, s{sWGL}, 7")
        k(f"s_lshr_b32 s{sT0}, s2, 3")
        k(f"s_min_u32 s{sT0}, s{sT0}, 27")
        k(f"s_mul_i32 s{sT1}, s{sT0}, 37")
        k(f"s_lshr_b32 s{sT1}, s{sT1}, 8")
        k(f"s_mul_i32 s{sT2}, s{sT1}, 7")
        k(f"s_sub_u32 s{sCB}, s{sT0}, s{sT2}")
        k(f"s_and_b32 s{sRB}, s2, 7")
        if self.opt("rinv", 0):
            k(f"s_xor_b32 s{sRB}, s{sRB}, {self.opt('rinv', 0)}")
        k(f"s_lshl2_add_u32 s{sRB}, s{sRB}, s{sT1}")
        k(f"s_mov_b32 s{sONES}, 0x3f803f80", f"s_mov_b32 s{sNEG}, 0xff800000")
        k(f"v_and_b32 v{vT0}, 31, v{vL}")
        k(f"v_lshrrev_b32 v{vT1}, 5, v{vL}")
        k(f"v_bfe_u32 v{vT2}, v{vL}, 1, 3")
        k(f"v_xor_b32 v{vT2}, v{vT2}, v{vT1}")
        k(f"v_lshlrev_b32 v{vT2}, 4, v{vT2}")
        k(f"v_lshl_add_u32 v{vT2}, v{vT0}, 7, v{vT2}")
        k(f"s_lshl_b32 s{sT0}, s{sTT}, 12")
        k(f"v_add_u32 v{vXR}, s{sT0}, v{vT2}")
        for j in range(1, 4):
            k(f"v_xor_b32 v{vXR+j}, {32*j}, v{vXR}")
        k(f"v_add_u32 v{vLO}, -1, v{vT1}")
        k(f"v_and_b32 v{vPOLL}, 15, v{vL}", f"v_lshlrev_b32 v{vPOLL}, 2, v{vPOLL}")
        k(f"v_mov_b32 v{vU+1}, 0", f"v_mov_b32 v{vU+3}, 0")
        k(f"v_and_b32 v{vGR}, 0x33, v{vL}", f"v_bfe_u32 v{vT0}, v{vL}, 2, 1", f"v_lshl_or_b32 v{vGR}, v{vT0}, 3, v{vGR}",
          f"v_bfe_u32 v{vT1}, v{vL}, 3, 1", f"v_lshl_or_b32 v{vGR}, v{vT1}, 2, v{vGR}",
          f"v_lshlrev_b32 v{vT0}, 1, v{vT0}", f"v_and_b32 v{vT1}, 1, v{vL}", f"v_or_b32 v{vT0}, v{vT0}, v{vT1}",
          f"v_bfe_u32 v{vT1}, v{vL}, 1, 1", f"v_lshl_or_b32 v{vT0}, v{vT1}, 2, v{vT0}", f"v_xor_b32 v{vT0}, 7, v{vT0}",
          f"v_lshlrev_b32 v{vT0}, 4, v{vT0}", f"v_lshl_add_u32 v{vT0}, v{vGR}, 7, v{vT0}",
          f"s_min_u32 s{sT1}, s{sW_}, 6", f"s_lshl_b32 s{sT0}, s{sT1}, 13", f"s_add_u32 s{sT0}, s{sT0}, {L_WR if self.ubase is None else self.ubase}",
          f"v_add_u32 v{vGA}, s{sT0}, v{vT0}", f"v_lshlrev_b32 v{vGR}, 1, v{vGR}",
          f"s_add_u32 s{sT0}, s{sROT}, s{sT1}", f"s_cmp_ge_u32 s{sT0}, 7", f"s_cselect_b32 s{sT1}, 7, 0",
          f"s_sub_u32 s{sT0}, s{sT0}, s{sT1}", f"s_lshl_b32 s{sT0}, s{sT0}, 7", f"s_add_u32 s{sT0}, s{sT0}, {L_SP + 4096}",
          f"v_add_u32 v{vGR}, s{sT0}, v{vGR}")

    def tlb_touch(self, isa):
        if not self.opt("tlb", 0):
            return
        k = self.k
        l = self.lab("tl")
        k(f"s_cmp_eq_u32 s{sW_}, 5")
        k(f"s_cbranch_scc0 {l}")
        k(f"v_and_b32 v{vT0}, 3, v{vL}", f"v_lshl_add_u32 v{vT0}, s{sTB}, 2, v{vT0}")
        k(f"v_lshlrev_b32 v{vT1}, 16, v{vT0}", f"v_add_u32 v{vT1}, {WS_O + 1920}, v{vT1}")
        if isa:
            k(f"s_lshl_b32 s{sT0}, s{sHP}, 17", f"s_lshl_b32 s{sT1}, s{sTB}, 12", f"s_add_u32 s{sT0}, s{sT0}, s{sT1}",
              f"s_add_u32 s{sT0}, s{sT0}, {WS_PART}", f"v_and_b32 v{vT0}, 1, v{vL}", f"v_lshl_add_u32 v{vT0}, v{vT0}, 16, s{sT0}")
        else:
            k(f"v_mul_u32_u24 v{vT0}, {TILE}, v{vT0}", f"s_min_u32 s{sT1}, s{sHP}, 6")
            k(f"s_lshl_b32 s{sT0}, s{sT1}, 12", f"s_add_u32 s{sT0}, s{sT0}, {WS_KB}", f"s_mul_i32 s{sT1}, s{sT1}, {4096 - 1024}",
              f"s_sub_u32 s{sT1}, {WS_VB - WS_KB}, s{sT1}")
            k(f"v_bfe_u32 v{vT2}, v{vL}, 3, 1", f"v_mul_u32_u24 v{vT2}, s{sT1}, v{vT2}", f"v_add3_u32 v{vT0}, v{vT0}, v{vT2}, s{sT0}")
        k(f"v_and_b32 v{vT2}, 4, v{vL}", f"v_cmp_eq_u32 vcc, 0, v{vT2}", f"v_cndmask_b32 v{vT0}, v{vT0}, v{vT1}, vcc")
        if self.opt("tlb", 0) & 2:
            k(f"s_lshl_b32 s{sT0}, s{sRB}, 17", f"s_add_u32 s{sT0}, s{sT0}, {WS_O + 1920}")
            k(f"v_writelane_b32 v{vT0}, s{sT0}, 16", f"s_mov_b32 s{sT0}, 0x20000", f"v_writelane_b32 v{vT0}, s{sT0}, 17")
        k.uncounted(f"buffer_load_dword v{ACB+1}, v{vT0}, {srd(SRD_WS)}, 0 offen ; spin")
        k(f"{l}:")
        if self.opt("tlb", 0) & 4:
            l = self.lab("tl")
            k(f"s_cmp_eq_u32 s{sW_}, 6")
            k(f"s_cbranch_scc0 {l}")
            k(f"s_mul_i32 s{sT0}, s{sRB}, {64*896}")
            k.uncounted(f"buffer_load_dword v{ACB+1}, off, {srd(SRD_O)}, s{sT0} ; spin")
            if self.opt("tlb", 0) & 8:
                k.uncounted(f"buffer_load_dword v{ACB+2}, off, {srd(SRD_A)}, 0 ; spin")
                k.uncounted(f"buffer_load_dword v{ACB+3}, off, {srd(SRD_B)}, 0 ; spin")
            k(f"{l}:")

    def tr_addr(self, dst, base):
        k = self.k
        k(f"v_bfe_u32 v{vT2}, v{vL}, 3, 1", f"v_lshlrev_b32 v{vT2}, 6, v{vT2}", f"v_xor_b32 v{vT0}, v{vT2}, v{vT0}",
          f"v_bfe_u32 v{vT2}, v{vL}, 2, 1", f"v_lshlrev_b32 v{vT2}, 4, v{vT2}", f"v_xor_b32 v{vT0}, v{vT2}, v{vT0}",
          f"v_and_b32 v{vT2}, 32, v{vL}", f"v_xor_b32 v{vT0}, v{vT2}, v{vT0}",
          f"v_lshl_add_u32 v{vT0}, v{vT2}, 5, v{vT0}",
          f"v_bfe_u32 v{vT2}, v{vL}, 2, 2", f"v_lshl_add_u32 v{vT0}, v{vT2}, 7, v{vT0}",
          f"v_add_u32 v{dst}, {base}, v{vT0}")

    def small_loads(self):
        k = self.k
        k(f"v_lshlrev_b32 v{vL16}, 4, v{vL}")
        k(f"s_mov_b32 s{SRD_M+3}, 0x20000")
        k(f"s_mul_i32 s{sT0}, s{sHP}, 3136", f"s_add_u32 s{sT1}, s{sT0}, 3136", f"s_add_u32 s{sT0}, s{sT0}, s{sW1K}")
        k(f"s_cmp_eq_u32 s{sW_}, 4")
        k(f"s_cselect_b32 s{SRD_M}, s30, s20", f"s_cselect_b32 s{SRD_M+1}, s31, s21", f"s_cselect_b32 s{SRD_M+2}, 896, s{sT1}",
          f"s_cselect_b32 s{sT0}, 0, s{sT0}")
        k(f"s_add_u32 m0, s{sW1K}, {L_SP}")
        k(f"s_lshl3_add_u32 s{sT1}, s{sBR}, s{sW_}", f"s_bitcmp1_b32 0x101f, s{sT1}")
        k(f"s_cbranch_scc0 L_nosmall")
        k.uncounted(f"buffer_load_dwordx4 v{vL16}, {srd(SRD_M)}, s{sT0} offen lds")
        k(f"L_nosmall:")

    def gate_load(self, d=vU):
        self.k(f"ds_read_u16 v{d}, v{vGR}")

    def gate_put(self):
        return [f"v_mov_b32 v{vU+2}, v{vU}", f"ds_write_b128 v{vGA}, {vr(vU,4)}"]

    def w2_addr(self, d):
        return [f"v_lshrrev_b32 v{vT0}, 3, v{vL}", f"v_and_b32 v{vT1}, 7, v{vL}", f"v_bfe_u32 v{vT2}, v{vL}, 4, 2",
                f"v_lshlrev_b32 v{vT2}, 1, v{vT2}", f"v_xor_b32 v{vT1}, v{vT2}, v{vT1}",
                f"s_lshl_b32 s{sT0}, s{sW_}, 3\nv_add_u32 v{d}, s{sT0}, v{vT0}",
                f"v_mul_u32_u24 v{d}, 896, v{d}", f"v_lshl_add_u32 v{d}, v{vT1}, 4, v{d}",
                f"s_lshl_b32 s{sT0}, s{sCB}, 7\nv_add_u32 v{d}, s{sT0}, v{d}"]

    def w2_rot(self):
        g = [f"s_add_u32 s{sW2B}, s{sW1K}, {L_W2A}", f"s_add_u32 s{sW2B+1}, s{sW1K}, {L_W2B}",
             f"s_and_b32 s{sXO}, s{sRB}, 3\ns_lshl_b32 s{sXO}, s{sXO}, 14"]
        for i in range(1, 7):
            g.append(f"s_add_u32 s{sXO+i}, s{sXO+i-1}, 8192\ns_cmp_eq_u32 s{sXO+i}, {7*8192}\ns_cselect_b32 s{sXO+i}, 0, s{sXO+i}")
        return g

    def set_flag(self, area):
        k = self.k
        if area == WS_F3 and self.opt("cnt3", 1):
            k(f"s_mul_i32 s{sT0}, s{sTB}, {14*128}", f"s_add_u32 s{sT0}, s{sT0}, {WS_F3}")
            k("s_mov_b64 exec, 0x3fff")
            t = k(f"buffer_atomic_add v{vFV}, v{vL128}, {srd(SRD_F)}, s{sT0} offen sc1")
            k("s_mov_b64 exec, -1")
            return t
        if area == WS_F1 and self.ubase == L_WR and self.opt("cnt1", 1):
            k(f"s_lshl_b32 s{sT0}, s{sHP}, 11")
            k("s_mov_b64 exec, 0xffff")
            t = k(f"buffer_atomic_add v{vFV}, v{vL128}, {srd(SRD_F)}, s{sT0} offen sc1")
            k("s_mov_b64 exec, -1")
            return t
        bit = {WS_F1: 1, WS_F2: 2, WS_F3: 4}[area]
        if bit == 1 and self.ubase == L_WR:
            bit = 8
        if self.opt("sflag", 0) & bit:
            l = self.lab("sf")
            k(f"s_cmp_eq_u32 s{sW_}, {self.opt('sfw', 7)}")
            k(f"s_cbranch_scc0 {l}")
            k(f"s_add_u32 s{sT0}, s{sF1}, {area}")
            k(f"s_mov_b32 s{sCNT}, 1")
            k(f"s_atomic_or s{sCNT}, s[{SRD_WS}:{SRD_WS+1}], s{sT0}")
            k(f"{l}:")
            return None
        k(f"s_add_u32 s{sT0}, s{sF1}, {area}")
        k("s_mov_b64 exec, 1")
        if self.opt("fmod", 0) == 2:
            t = k(f"buffer_atomic_or v{vFV}, off, {srd(SRD_F)}, s{sT0} sc1")
        else:
            t = k(f"buffer_store_dword v{vFV}, off, {srd(SRD_F)}, s{sT0} {['sc1', 'sc0 sc1'][self.opt('fmod', 0)]}")
        k("s_mov_b64 exec, -1")
        return t

    def poll_issue(self, sr=SRD_WS, addr=vPOLL):
        return self.k(f"buffer_load_dword v{vPV}, v{addr}, {srd(sr)}, 0 offen sc1")

    def look(self, sr, addr, lanes):
        k = self.k
        if not lanes:
            return k(f"buffer_load_dword v{vPV}, v{addr}, {srd(sr)}, 0 offen sc1")
        k(f"v_mov_b32 v{vPV}, 64")
        k(f"s_mov_b64 exec, {lanes}")
        k(f"v_mov_b32 v{vPV}, 0")
        t = k(f"buffer_atomic_or v{vPV}, v{addr}, {srd(sr)}, 0 offen sc0 sc1")
        k("s_mov_b64 exec, -1")
        return t

    def lanes1(self):
        if self.ubase == L_WR:
            return (1 if self.opt("cnt1", 1) else 0xffff) if self.opt("apm", 3) & 1 else 0
        return 0x3f if self.opt("apm", 3) & 2 else 0

    def poll_check(self, sr=SRD_WS, addr=vPOLL, need=1, lanes=0, own=None):
        k = self.k

        def spin():
            l, d = self.lab("pl"), self.lab("pd")
            deep = self.opt("pdepth2", 0) if lanes else 0
            reg = own if deep else vPV
            k(f"s_mov_b32 s{sCNT}, 0")
            if deep:
                k(f"v_mov_b32 v{reg}, v{vPV}")
            k(f"{l}:")
            if deep:
                k(f"s_mov_b64 exec, {lanes}")
                k(f"buffer_atomic_umax v{reg}, v{addr}, {srd(sr)}, 0 offen sc0 sc1 ; spin")
                k("s_mov_b64 exec, -1")
            else:
                self.look(sr, addr, lanes)
            k(f"s_add_u32 s{sCNT}, s{sCNT}, 1")
            k(f"s_waitcnt vmcnt({deep})")
            k(f"v_cmp_gt_u32 vcc, {need}, v{reg}")
            k(f"s_cmp_lt_u32 s{sCNT}, 0x8000")
            k(f"s_cbranch_scc0 {d}")
            k(f"s_cbranch_vccnz {l}")
            k(f"{d}:")
        k(f"v_cmp_gt_u32 vcc, {need}, v{vPV}")
        self.rare("s_cbranch_vccnz", spin)

    def poll1_issue(self, addr=vPOLL):
        return self.look(SRD_D, addr, self.lanes1())

    def poll1_check(self, addr=vPOLL, need=1, own=vP2):
        k = self.k
        k(f"v_or_b32 v{vPV}, s{sROT}, v{vPV}")
        self.poll_check(SRD_D, addr, need, self.lanes1(), own)

    def flag_setup(self):
        return [
                f"s_lshl2_add_u32 s{sT0}, s{sTB}, s{sTT}\ns_lshl_b32 s{sT0}, s{sT0}, 5\ns_lshr_b32 s{sT1}, s{sWGL}, 4\n"
                f"s_lshl1_add_u32 s{sT1}, s{sT1}, s{sHH}\ns_add_u32 s{sT0}, s{sT0}, s{sT1}\ns_mul_i32 s{sT0}, s{sT0}, {self.SO}\n"
                f"s_add_u32 s{sWGL}, s{sT0}, {WS_O}",
                f"v_mov_b32 v{vFV}, 1", f"v_lshlrev_b32 v{vL128}, 7, v{vL}",
                f"s_mov_b32 s{SRD_F}, s{SRD_WS}\ns_mov_b32 s{SRD_F+1}, s{SRD_WS+1}\ns_cmp_eq_u32 s{sW_}, 0\ns_cselect_b32 s{SRD_F+2}, {NFLAG*128}, 0"]

    def ann_issue(self):
        self.tokann = self.poll_issue(SRD_D)

    def ann_check(self):
        k = self.k
        k.wait(vm=self.tokann)
        self.poll_check(SRD_D)
        k(f"v_mov_b32 v{vPOLL}, v{vP2}")
        k(f"s_mov_b32 s{SRD_D}, s{SRD_WS}")
        k(f"s_mov_b32 s{SRD_D+1}, s{SRD_WS+1}")
        k(f"s_cmp_eq_u32 s{sW_}, 1")
        k(f"s_cselect_b32 s{SRD_D+2}, {NFLAG*128}, 0")
        k(f"s_cselect_b32 s{sROT}, 0, 64")

    def step(self, s, mats, tok, bg=None, mem=None, end=None, w=None, flush=False, old=None, xread=False, mid=None, prio=False):
        k = self.k
        c = s % 7
        mem = mem or {}
        old = old or []
        nm = len(mats)
        if tok is not None:
            k.wait(vm=tok)
            if mid:
                mid()
            k("s_barrier")
        self.stamp(step=s)
        tr = {}

        def rd(j):
            if xread:
                k(f"ds_read_b128 {vr(X + (4*c+j)*4, 4)}, v{vXR+j} offset:{L_X + (s % 3) * 16384}")
            for m, (acc, swap, wf, addr, base, first) in enumerate(mats):
                k(f"ds_read_b64_tr_b16 {vr(wf+4*j,2)}, v{addr} offset:{base + j*2048}")
                tr[j, m] = k(f"ds_read_b64_tr_b16 {vr(wf+4*j+2,2)}, v{addr} offset:{base + j*2048 + 512}")

        def mf(j, m):
            acc, swap, wf, addr, base, first = mats[m]
            xf, wv = vr(X + (4 * c + j) * 4, 4), vr(wf + 4 * j, 4)
            a, b = (xf, wv) if swap else (wv, xf)
            if self.opt("x_m16", 0) & (1 if self.ubase == L_WR else 2):
                xg = vr(X + (4 * c + (j & ~1)) * 4, 4)
                a2, b2 = (xg, wv) if swap else (wv, xg)
                r = acc + 8 * (j % 2)
                z = first and j < 2
                return (f"v_mfma_f32_16x16x32_bf16 {vr(r,4)}, {a}, {b}, {'0' if z else vr(r,4)}\n"
                        f"v_mfma_f32_16x16x32_bf16 {vr(r+4,4)}, {a2}, {b2}, {'0' if z else vr(r+4,4)}")
            return f"v_mfma_f32_32x32x16_bf16 {vr(acc,16)}, {a}, {b}, {'0' if (first and j == 0) else vr(acc,16)}"
        nslot = 4 * nm
        slots = split_by_cost(bg or [], list(w) if w else [1] * (nslot - 1) + [self.opt("w3", 0)])

        def slot(i):
            for x in self.defer:
                k(x)
            self.defer = []
            for f in mem.get(i, []):
                f()
            for x in slots[i]:
                if x.startswith("ds_write"):
                    self.defer.append(x)
                else:
                    k(x)
        per = 4 // (2 * nm)
        for i in range(2 * nm):
            if prio:
                k(f"s_setprio {3 - i}")
            if i < len(old):
                k(old[i])
            for j in range(i * per, (i + 1) * per):
                rd(j)
            slot(i)
        assert len(old) in (0, 2 * nm)
        i = 2 * nm
        for j in range(2):
            for m in range(nm):
                if prio:
                    k(f"s_setprio {1 - j}")
                k.wait(lg=tr[j, m])
                k(mf(j, m))
                slot(i); i += 1
        k.wait(lg=tr[3, nm - 1])
        left = [mf(j, m) for j in (2, 3) for m in range(nm)]
        if flush:
            for x in left:
                k(x)
                for y in self.defer:
                    k(y)
                self.defer = []
            left = []
        for f in end or []:
            f()
        return left

    def pack16(self, src, dst):
        return [f"v_cvt_pk_bf16_f32 v{dst+i}, v{src+2*i}, v{src+2*i+1}" for i in range(8)]

    def zero_pad(self, dst):
        return [f"v_and_b32 v{dst+6}, v{vLO}, v{dst+6}", f"v_and_b32 v{dst+7}, v{vLO}, v{dst+7}"]

    def o_epilogue(self, OA, eps):
        k = self.k
        self.stamp(step=99)
        if eps:
            k(f"v_add_f32 v{vT0}, {hex(f2u(1e-6))}, v{OA+12}")
            k(f"v_mul_f32 v{vT0}, v{vG}, v{vT0}")
        else:
            k(f"v_mul_f32 v{vT0}, v{vG}, v{OA+12}")
        k(f"v_rcp_f32 v{vB}, v{vT0}")
        k(f"v_lshrrev_b32 v{vT1}, 1, v{vL16}")
        k(f"v_mov_b32 v{vB+1}, v{vB}")
        k(f"v_permlane32_swap_b32 v{vB}, v{vB+1}")
        for h in range(2):
            for i in range(8 * h, 8 * h + 8):
                k(f"v_mul_f32 v{OA+i}, v{vB+1}, v{OA+i}")
            for i in range(4 * h, 4 * h + 4):
                k(f"v_cvt_pk_bf16_f32 v{F8+i}, v{OA+2*i}, v{OA+2*i+1}")
            if h:
                k("s_mov_b32 exec_hi, 0")
            k(f"buffer_store_dwordx4 {vr(F8+4*h,4)}, v{vL16}, {srd(SRD_WS)}, s{sWGL} offen offset:{1024*h} sc1")
        k("s_not_b64 exec, exec")
        k(f"buffer_store_dwordx2 {vr(F8+4,2)}, v{vT1}, {srd(SRD_WS)}, s{sWGL} offen offset:{1536 - 256} sc1")
        k("s_mov_b64 exec, -1")

    def touch_rows(self, sidx, dst):
        k = self.k
        k(f"v_min_u32 v{vT0}, 48, v{vL}")
        k(f"v_mul_u32_u24 v{vT1}, 37, v{vT0}")
        k(f"v_lshrrev_b32 v{vT1}, 8, v{vT1}")
        k(f"v_mul_u32_u24 v{vT1}, 14, v{vT1}")
        k(f"v_add_lshl_u32 v{dst}, v{vT0}, v{vT1}, 7")
        k(f"s_mul_i32 s{sT0}, s{sidx}, {7*2688}")
        k(f"v_add_u32 v{dst}, s{sT0}, v{dst}")

    def touch_early(self, T, w0, sr=SRD_A):
        k = self.k
        if not T:
            return
        l = self.lab("tv")
        if T == 48:
            k(f"s_sub_u32 s{sT0}, s{sW_}, {w0}", f"s_cmp_lt_u32 s{sT0}, 2")
        else:
            k(f"s_cmp_eq_u32 s{sW_}, {w0 if T & 16 else w0 + 1}")
        k(f"s_cbranch_scc0 {l}")
        k(f"s_lshl4_add_u32 s{sT2}, s{sHP}, s{sTB}")
        k(f"v_min_u32 v{vT0}, 27, v{vL}", f"v_mul_u32_u24 v{vT1}, 37, v{vT0}", f"v_lshrrev_b32 v{vT1}, 8, v{vT1}",
          f"v_mul_u32_u24 v{vT1}, 14, v{vT1}", f"v_add_lshl_u32 v{vT0}, v{vT0}, v{vT1}, 7", f"s_mul_i32 s{sT0}, s{sT2}, {4*2688}")
        self.mk(sr, 18, 448 * 2688)
        k(f"s_cmp_eq_u32 s{sW_}, {w0}")
        k(f"s_cselect_b32 s{sr}, s18, s26", f"s_cselect_b32 s{sr+1}, s19, s27", f"s_cselect_b32 s{sT1}, 1792, 0")
        k(f"s_add_u32 s{sT0}, s{sT0}, s{sT1}")
        k.uncounted(f"buffer_load_dword v{ACB}, v{vT0}, {srd(sr)}, s{sT0} offen ; spin")
        k(f"{l}:")

    def helper_early(self):
        k = self.k
        T = self.opt("touch", 4)
        k(f"s_cmp_eq_u32 s{sW_}, 3")
        k("s_cbranch_scc0 L_h1")
        k(f"v_min_u32 v{vT0}, 39, v{vL}")
        k(f"v_lshlrev_b32 v{vT0}, 7, v{vT0}")
        k(f"s_mul_i32 s{sT0}, s{sTB}, {40*128}")
        k(f"v_mov_b32 v{vT1}, 0")
        k.uncounted(f"buffer_store_dword v{vT1}, v{vT0}, {srd(SRD_WS)}, s{sT0} offen sc1")
        k("L_h1:")
        k("s_barrier")
        k(f"s_lshl2_add_u32 s{sT2}, s{sTB}, s{sTT}")
        self.touch_rows(sT2, vT2)
        k(f"s_cmp_eq_u32 s{sHH}, 0")
        k(f"s_cselect_b32 s{SRD_Z}, s18, s26", f"s_cselect_b32 s{SRD_Z+1}, s19, s27", f"s_cselect_b32 s{sT0}, 1792, 0")
        k(f"s_mov_b32 s{SRD_Z+2}, {448*2688}")
        if T & 1:
            k.uncounted(f"buffer_load_dword v{ACA}, v{vT2}, {srd(SRD_Z)}, s{sT0} offen")
        if T & 8:
            k(f"s_cselect_b32 s{SRD_Z+2}, s{SRD_Z+2}, 0")
            k.uncounted(f"buffer_load_dword v{ACA+3}, v{vT2}, {srd(SRD_Z)}, 0 offen")
        if T & 4:
            k(f"s_cselect_b32 s{SRD_Z}, s22, s28", f"s_cselect_b32 s{SRD_Z+1}, s23, s29", f"s_mov_b32 s{SRD_Z+2}, {448*896}")
            k(f"s_mul_i32 s{sT0}, s{sT2}, {49*128}", f"v_lshlrev_b32 v{vT0}, 7, v{vT0}")
            k.uncounted(f"buffer_load_dword v{ACA+4}, v{vT0}, {srd(SRD_Z)}, s{sT0} offen")
        k(f"s_mov_b32 s{SRD_Z+2}, 0")

    def announce(self):
        k = self.k

        T0 = self.opt("touch", 4)

        def body():
            k(f"s_waitcnt vmcnt({bin(T0 & 13).count('1')})")
            k(f"s_lshl_b32 s{sT0}, s{sTB}, 2")
            k(f"v_mov_b32 v{vFV}, 1")
            k("s_mov_b64 exec, 1")
            k(f"buffer_store_dword v{vFV}, off, {srd(SRD_D)}, s{sT0} sc1")
            k("s_mov_b64 exec, -1")
        k(f"s_lshl3_add_u32 s{sT0}, s{sW_}, s{sHP}")
        k(f"s_cmp_eq_u32 s{sT0}, {3*8 + 7}")
        self.rare("s_cbranch_scc1", body)

    def setup_b(self):
        k = self.k
        CD, CO = R16A, R16B
        def cq():
            k(f"v_and_b32 v{vT0}, 3, v{vL}", f"v_bfe_u32 v{vT2}, v{vL}, 4, 1", f"v_lshl_add_u32 v{vT0}, v{vT2}, 2, v{vT0}")

        def swap01():
            k(f"v_and_b32 v{vT1}, 1, v{vL}", f"v_bfe_u32 v{vT0}, v{vL}, 1, 1", f"v_lshl_or_b32 v{vT0}, v{vT1}, 1, v{vT0}",
              f"v_bfe_u32 v{vT2}, v{vL}, 4, 1", f"v_lshl_or_b32 v{vT0}, v{vT2}, 2, v{vT0}")
        k(f"s_lshl_b32 s{sT0}, s{sHH}, 6")
        swap01()
        k(f"v_lshl_add_u32 v{vT0}, v{vT0}, 3, s{sT0}")
        self.tr_addr(vWR, L_KR)
        cq()
        k(f"v_lshl_add_u32 v{vT0}, v{vT0}, 3, s{sT0}")
        self.tr_addr(vWRV, L_WR)

    def late_b(self):
        CD, CO = R16A, R16B
        kk, self.k = self.k, K()
        k = self.k
        k(f"v_and_b32 v{vT1}, 1, v{vL}", f"v_bfe_u32 v{vT0}, v{vL}, 1, 1", f"v_lshl_or_b32 v{vT0}, v{vT1}, 1, v{vT0}",
          f"v_bfe_u32 v{vT2}, v{vL}, 4, 1", f"v_lshl_or_b32 v{vT0}, v{vT2}, 2, v{vT0}",
          f"v_add_u32 v{vT1}, 1, v{vT0}", f"v_and_b32 v{vT1}, 8, v{vT1}", f"v_or_b32 v{vT0}, v{vT0}, v{vT1}",
          f"v_lshlrev_b32 v{vT0}, 3, v{vT0}", f"v_lshlrev_b32 v{vT1}, 6, s{sHH}", f"v_xor_b32 v{vT0}, v{vT1}, v{vT0}")
        self.tr_addr(vWRQ, L_QB)
        k(f"v_lshrrev_b32 v{vT0}, 5, v{vL}", f"v_mul_u32_u24 v{vT0}, {7168 - 512}, v{vT0}", f"v_add_u32 v{vVS}, v{vT0}, v{vL16}")
        ad = [x.text for x in k.ins]
        self.k = kk
        mk = [f"v_and_b32 v{vT0}, 31, v{vL}", f"v_lshlrev_b32 v{vT0}, v{vT0}, -2", f"v_lshrrev_b32 v{vT2}, 3, v{vL}",
              f"v_and_b32 v{vT2}, 4, v{vT2}", f"v_lshrrev_b32 v{vTA}, v{vT2}, v{vT0}"]
        for r in range(16):
            cr = (r & 3) + 8 * (r >> 2)
            mk += [f"v_bfe_i32 v{CD+r}, v{vTA}, {cr}, 1", f"v_lshlrev_b32 v{CD+r}, 23, v{CD+r}", f"v_xor_b32 v{CO+r}, 0xff800000, v{CD+r}"]
        return ad, mk

    def setup_b2(self):
        k = self.k
        k(f"s_cmp_ge_u32 s{sW_}, 4", f"s_cselect_b32 s{sT0}, {6*8192}, 0", f"s_sub_u32 s{sT0}, {2*8192}, s{sT0}")
        k(f"s_cmp_ge_u32 s{sW_}, 6", f"s_cselect_b32 s{sT0}, {L_SP - L_QB - 6*8192}, s{sT0}")
        if self.opt("cpro", 1):
            k(f"s_sub_u32 s{sT0}, s{sT0}, {L_WR - L_QB}")
        k(f"v_add_u32 v{vGA}, s{sT0}, v{vGA}")
        k(f"s_lshl2_add_u32 s{sT0}, s{sTB}, s{sTT}", f"s_mul_i32 s{sKV}, s{sT0}, {TILE}")
        k(f"v_and_b32 v{vT0}, 1, v{vL}", f"v_sub_u32 v{vT0}, s{sHP}, v{vT0}", f"v_med3_i32 v{vT0}, v{vT0}, 0, 6",
          f"v_bfe_u32 v{vT1}, v{vL}, 1, 2", f"s_min_u32 s{sT0}, s{sTB}, 2", f"v_min_u32 v{vT1}, s{sT0}, v{vT1}",
          f"v_sub_u32 v{vT1}, s{sTB}, v{vT1}", f"v_lshl_add_u32 v{vT0}, v{vT0}, 4, v{vT1}",
          f"v_add_u32 v{vT0}, 128, v{vT0}", f"v_lshlrev_b32 v{vP2}, 7, v{vT0}")
        if not self.opt("blate", 0):
            ad, mk = self.late_b()
            k(*ad); k(*mk)
        if not self.opt("touch", 4) & 2:
            k(f"s_mov_b32 s{SRD_T+3}, 0x20000")
            return
        k(f"s_and_b32 s{sT2}, s{sWGL}, 63")
        self.touch_rows(sT2, vTA)
        self.mk(SRD_T, 18, 448 * 2688)
        k(f"s_bitcmp1_b32 s{sWGL}, 6")
        k(f"s_cselect_b32 s{SRD_T+2}, 0, s{SRD_T+2}")
        k(f"s_cselect_b32 s{sT1}, s22, s28", f"s_cselect_b32 s{sT3}, s23, s29")
        k(f"s_cmp_eq_u32 s{sW_}, 0")
        k(f"s_cselect_b32 s{SRD_T+2}, s{SRD_T+2}, 0")
        k(f"s_cmp_eq_u32 s{sW_}, 1")
        k(f"s_cselect_b32 s{SRD_T}, s{sT1}, s{SRD_T}", f"s_cselect_b32 s{SRD_T+1}, s{sT3}, s{SRD_T+1}",
          f"s_cselect_b32 s{SRD_T+2}, {448*896}, s{SRD_T+2}", "s_cselect_b64 vcc, -1, 0")
        k(f"s_mul_i32 s{sT0}, s{sT2}, {49*128}", f"v_lshlrev_b32 v{vT0}, 7, v{vT0}", f"v_add_u32 v{vT0}, s{sT0}, v{vT0}",
          f"v_cndmask_b32 v{vTA}, v{vTA}, v{vT0}, vcc")

    def attn_consts(self):
        return [
            f"s_lshl_b32 s{sT0}, s{sTT}, 12\ns_lshl_b32 s{sT1}, s{sHH}, 11\ns_add_u32 s{sKL}, s{sT0}, s{sT1}\n"
            f"s_add_u32 s{sT0}, s{sKL}, {L_KA}\nv_add_u32 v{vK0}, s{sT0}, v{vL16}",
            f"v_lshrrev_b32 v{vT0}, 5, v{vL}", f"s_lshl_b32 s{sT1}, s{sHH}, 11\nv_mul_u32_u24 v{vT0}, s{sT1}, v{vT0}",
            f"v_sub_u32 v{vK1}, v{vK0}, v{vT0}", f"v_add_u32 v{vK1}, 1024, v{vK1}",
            f"v_and_b32 v{vT0}, 31, v{vL}", f"s_mul_i32 s{sT0}, s{sHH}, 28\nv_add_u32 v{vT1}, s{sT0}, v{vT0}",
            f"s_lshl_b32 s{sT0}, s{sHH}, 5\nv_or_b32 v{vT0}, s{sT0}, v{vT0}",
            f"v_cmp_eq_u32 vcc, 28, v{vT0}\nv_cndmask_b32 v{vT1}, v{vT1}, 60, vcc",
            f"v_lshrrev_b32 v{vT0}, 5, v{vL}", f"v_lshl_add_u32 v{vT1}, v{vT0}, 6, v{vT1}",
            f"s_lshl_b32 s{sT0}, s{sTT}, 12\ns_add_u32 s{sT0}, s{sT0}, {L_VA}\nv_lshl_add_u32 v{vVA}, v{vT1}, 4, s{sT0}",
            f"s_sub_u32 s{sKM}, s{sHH}, 1\nv_or_b32 v{vMA}, s{sKM}, v{vLO}",
            f"s_not_b32 s{sT0}, s{sKM}\nv_or_b32 v{vMB}, s{sT0}, v{vLO}",
            f"v_min_u32 v{vT0}, 11, v{vL}", f"v_lshrrev_b32 v{vT1}, 2, v{vT0}",
            f"v_cmp_ge_u32 vcc, s{sTB}, v{vT1}\nv_mov_b32 v{vT2}, s{sONES}\nv_cndmask_b32 v{ONE}, 0, v{vT2}, vcc",
            f"v_mov_b32 v{ONE+1}, v{ONE}", f"v_mov_b32 v{ONE+2}, v{ONE}", f"v_mov_b32 v{ONE+3}, v{ONE}",
            f"v_sub_u32 v{vT1}, 2, v{vT1}", f"v_lshlrev_b32 v{vT1}, 14, v{vT1}",
            f"v_bfe_u32 v{vT2}, v{vT0}, 1, 1", f"v_lshl_add_u32 v{vT1}, v{vT2}, 10, v{vT1}",
            f"v_and_b32 v{vT2}, 1, v{vT0}", f"v_lshl_add_u32 v{vT1}, v{vT2}, 6, v{vT1}",
            f"v_add_u32 v{vU}, s{sKL}, v{vT1}"]

    def attn_late(self):
        return [
                f"s_mov_b32 s{SRD_T}, s{SRD_WS}\ns_mov_b32 s{SRD_T+1}, s{SRD_WS+1}\ns_cmp_ge_u32 s{sTB}, 1\ns_cselect_b32 s{SRD_T+2}, {WS_BYTES}, 0",
                f"s_mov_b32 s{SRD_M}, s{SRD_WS}\ns_mov_b32 s{SRD_M+1}, s{SRD_WS+1}\ns_cmp_ge_u32 s{sTB}, 2\ns_cselect_b32 s{SRD_M+2}, {WS_BYTES}, 0"]

    def path_b(self):
        k = self.k
        CD, CO = R16A, R16B
        k("L_path_b:")
        self.ubase = L_QB
        T = self.opt("touch", 4)
        V0 = self.opt("bv0", 1)
        if V0 and self.opt("cpro", 1):
            self.toku[0] = self.tokv0
        if self.opt("cpro", 1):
            self.touch_early(T & 48, 0, SRD_T)
        if not self.opt("cpro", 1):
            k(f"v_min_u32 v{vT1}, 6, v{vT2}", f"v_lshl_add_u32 v{vWQ}, v{vT1}, 4, v{vT0}")
            k(f"s_mul_i32 s{sT0}, s{sHP}, 112", f"v_add_u32 v{vWQ}, s{sT0}, v{vWQ}")
            self.setup_early()
            k("s_barrier")
            self.dma1(0, 3) if V0 else self.dma1(1, 0)
            self.touch_early(T & 48, 0)
            self.setup_common()
        self.tlb_touch(False)
        k(f"s_cmp_eq_u32 s{sHP}, 7")
        self.rare("s_cbranch_scc1", self.helper_early)
        self.setup_b()
        self.stamp(step=-2)
        self.setup_b2()
        self.announce()
        self.stamp(step=-1)
        tk = {}
        srds = [SRD_WS, SRD_T, SRD_M]
        sKG, sVG = sONES, sNEG
        late = self.attn_late() + [f"v_mov_b32 v{d}, v{144+i}" for i, d in enumerate((vFA, vFB, vFO, vFP))]
        consts = self.final_consts(144, 145, 146, 147, 148) + self.attn_consts() + [
            f"s_mul_i32 s{sKG}, s{sHP}, 3584\ns_add_u32 s{sKG}, s{sKG}, s{sKV}\ns_lshl_b32 s{sT0}, s{sHH}, 11\ns_add_u32 s{sKG}, s{sKG}, s{sT0}",
            f"s_mul_i32 s{sVG}, s{sHP}, 896\ns_add_u32 s{sVG}, s{sVG}, s{sKV}\ns_mul_i32 s{sT0}, s{sHH}, 14336\ns_add_u32 s{sVG}, s{sVG}, s{sT0}"]
        GD = 152
        gate_ld = lambda: self.gate_load(GD)
        gate_prep = [f"v_mov_b32 v{GD+1}, 0", f"v_mov_b32 v{GD+2}, v{GD}", f"v_mov_b32 v{GD+3}, 0"]
        mid5 = self.w2_addr(vD2) + self.w2_rot() + [f"v_mov_b32 v{vFS}, v148"]
        st36 = lambda name, dflt: [int(c, 36) for c in str(self.opt(name, dflt))]
        QS = st36("bqs", "6689cdd")
        BAR = st36("bbar", "7dej")

        lad, lmk = self.late_b()
        assert not (T & 2 and self.opt("blate", 0))

        def helper_phase():
            tx, tu = dict(self.tokx), dict(self.toku)
            if V0:
                self.dma1(1, 0)
            self.dma1(1, 1)
            k("s_waitcnt vmcnt(2)" if V0 else "s_waitcnt vmcnt(1)")
            qs = [7 + j for j in range(7) if QS[j] < 14]
            for s in range(7):
                if s:
                    k.wait(vm=self.tokx[s])
                k("s_barrier")
                for j in range(4):
                    k(f"ds_read_b128 {vr(X + (4*s+j)*4, 4)}, v{vXR+j} offset:{L_X + (s % 3) * 16384}")
                if s == 2:
                    gate_ld()
                if s + 2 <= 6:
                    self.dma1(s + 2, 0); self.dma1(s + 2, 1)
                k("s_waitcnt lgkmcnt(0)")
            k("s_barrier")
            k(*gate_prep)
            k(f"ds_write_b128 v{vGA}, {vr(GD,4)}")
            for _ in range(3):
                self.dma_unit(qs.pop(0))
            k(*self.flag_setup())
            ta = self.tokann if hasattr(self, "tokann") else None
            self.ann_issue()
            k(*consts)
            if self.opt("blate", 0):
                k(*lad); k(*lmk)
            k(*late)
            k(*mid5)
            while qs:
                self.dma_unit(qs.pop(0))
            self.ann_check()
            self.tokann = ta
            k("s_waitcnt vmcnt(0) lgkmcnt(0)")
            k("s_branch L_qphase")
            self.tokx, self.toku = tx, tu
        k(f"s_cmp_eq_u32 s{sHP}, 7")
        self.rare("s_cbranch_scc1", helper_phase)
        if self.opt("visp", 0) == 0:
            self.visits("b", ["b_1", "b_2", "ab_f"])
        if V0:
            self.dma1(1, 0)
        self.dma1(1, 1)
        self.dma1(1, 2)
        if self.opt("visp", 0) == 1:
            self.visits("b", ["b_1", "b_2", "ab_f"])
        VP8 = WPH
        if self.opt("balign", 1) == 2:
            k("L_bpage:")

        def st_k(h):
            k(f"s_lshl1_add_u32 s{sT0}, s{sHP}, s{sHH}", f"s_lshl_b32 s{sT0}, s{sT0}, 11", f"s_add_u32 s{sT0}, s{sT0}, s{sKV}",
              f"s_add_u32 s{sT0}, s{sT0}, {WS_KB}")
            tk["Kst"] = k(f"buffer_store_dwordx4 {vr(F8+4*h,4)}, v{vL16}, {srd(SRD_WS)}, s{sT0} offen offset:{1024*h} sc1")

        def st_v(h):
            k(f"s_lshl1_add_u32 s{sT0}, s{sHP}, s{sHH}", f"s_lshl_b32 s{sT0}, s{sT0}, 9", f"s_add_u32 s{sT0}, s{sT0}, s{sKV}",
              f"s_add_u32 s{sT0}, s{sT0}, {WS_VB + 14336*h}")
            tk["Vst"] = k(f"buffer_store_dwordx4 {vr(VP8+4*h,4)}, v{vVS}, {srd(SRD_Z)}, s{sT0} offen sc1")

        def ld_k(which):
            k(f"s_add_u32 m0, s{sKL}, {L_KA + (2 - which) * 16384}")
            k(f"s_add_u32 s{sT0}, s{sKG}, {WS_KB - which * 4 * TILE}")
            k(f"buffer_load_dwordx4 v{vL16}, {srd(srds[which])}, s{sT0} offen sc1 lds")
            k(f"s_mov_b32 exec_hi, s{sKM}")
            tk[f"K{which}"] = k(f"buffer_load_dwordx4 v{vL16}, {srd(srds[which])}, s{sT0} offen offset:1024 sc1 lds")
            k("s_mov_b32 exec_hi, -1")

        def ld_v(which):
            k("s_mov_b32 exec_hi, 0xffffff")
            for i in range(2):
                k(f"s_add_u32 m0, s{sKL}, {L_VA + (2 - which) * 16384 + 1024 * i}")
                k(f"s_add_u32 s{sT0}, s{sVG}, {WS_VB - which * 4 * TILE + 7168 * i}")
                tk["V"] = k(f"buffer_load_dwordx4 v{vL16}, {srd(srds[which])}, s{sT0} offen sc1 lds")
            k("s_mov_b32 exec_hi, -1")
        KF = self.opt("kflag", 13)
        VS = self.opt("vst", 14)
        VF_ = self.opt("vflag", 19)
        PS = self.opt("kpoll", 17)
        KD = self.opt("kdma", 19)
        W2S = st36("bw2s", "z")
        assert 7 in BAR and 14 in BAR and KF in BAR and (KD in BAR or KD == 21) and (VF_ in BAR or VF_ > 20)
        vs = [u for u in range(7) if u not in self.toku]
        bgs = split_by_cost(consts, [1] * 4)
        w2a = list(range(7))
        kq = [lambda: ld_k(0), lambda: ld_k(1), lambda: ld_k(2)]
        old = []
        for s in range(21):
            mem = {i: [] for i in range(4)}
            kw = {}
            if s < 7:
                tok = self.tokx[s]
            elif s in BAR:
                nb = min([x for x in BAR if x > s] + [21])
                tok = max(self.toku[x - 7] for x in range(s, nb))
            else:
                tok = None
            if s + 2 <= 6:
                for p in range(3):
                    mem[1 + p].append(lambda p=p: self.dma1(s + 2, p))
            if s <= 6:
                NL = self.opt("bvlate", 0)
                n = 2 if s >= 5 else (1 if len(vs) - NL > 2 + (4 - s) else 0)
                for i in range(n):
                    if len(vs) > NL:
                        mem[0 if s <= 4 else 1 + i].append(lambda u=vs.pop(0): self.dma1(u, 3))
            if s == 2:
                mem[1].insert(0, gate_ld)
            if 1 <= s <= 4:
                kw["bg"] = bgs[s - 1]
            if s == 5:
                kw["bg"] = self.flag_setup() + gate_prep + mid5
            if s == 6:
                mem[2].append(self.ann_issue)
            SP = self.opt("stprio", 3)
            if (s == 7 and SP & 1) or (s == 14 and SP & 2):
                kw["mid"] = lambda: k("s_setprio 1")
            KE_ = self.opt("kearly", 0)
            if s == 6 and KE_:
                kw["end"] = [lambda: k(*self.pack16(ACA, F8)[:4]), lambda: st_k(0), lambda: k(*self.pack16(ACA, F8)[4:]), lambda: st_k(1)]
                if T & 2:
                    kw["end"].append(lambda: k(f"buffer_load_dword v{vG}, v{vTA}, {srd(SRD_T)}, 0 offen"))
            if s == 7:
                while vs:
                    mem[0].append(lambda u=vs.pop(0): self.dma1(u, 3))
            if s == 7 and not KE_:
                kw.update(bg=self.pack16(ACA, F8), w=(0, 0, 1, 0))
                mem[3].append(lambda: st_k(0))
            if s == 8:
                if not KE_:
                    mem[0].append(lambda: st_k(1))
                if SP & 1:
                    mem[self.opt("spk", 2)].append(lambda: k("s_setprio 0"))
                if T & 2 and not KE_:
                    mem[1].append(lambda: k(f"buffer_load_dword v{vG}, v{vTA}, {srd(SRD_T)}, 0 offen"))
            if s == 9:
                mem[3].append(lambda: k(f"ds_write_b128 v{vGA}, {vr(GD,4)}"))
            if self.opt("blate", 0) and s in (6, 8, 9, 11, 12, 13):
                kw["bg"] = lad if s == 6 else split_by_cost(lmk, [1] * 5)[(8, 9, 11, 12, 13).index(s)]
            if s == 10:
                kw["bg"] = late + [f"s_mov_b32 s{SRD_Z}, s{SRD_WS}\ns_mov_b32 s{SRD_Z+1}, s{SRD_WS+1}\ns_mov_b32 s{SRD_Z+2}, {WS_BYTES}"]
            if s == 11:
                mem[2].append(self.ann_check)
            if s == KF:
                tok = max(tok, tk["Kst"])
                if self.opt("kf0", 1):
                    mem[0].append(lambda: self.set_flag(WS_F1))
            sl = 1 if s != 6 else 0
            for j in range(7):
                if QS[j] == s:
                    assert s >= 5 + j // 2 or j == 6
                    mem[3 if s == 5 else min(3, sl + (QS.count(s) == 1 and s != 6))].append(lambda u=7 + j: self.dma_unit(u)); sl += 1
            if s == KF and not self.opt("kf0", 1):
                mem[3].append(lambda: self.set_flag(WS_F1))
            if s == 14:
                kw.update(bg=self.pack16(ACB, VP8), w=(1, 1, 0, 0))
            if s == 19:
                kw.update(bg=[f"v_add_u32 v{vWRQ}, {L_SP - L_QB - 6*8192}, v{vWRQ}"], w=(0, 0, 1, 0))
            if s == VF_:
                tok = max(tok, tk["Vst"])
                mem[0].append(lambda: self.set_flag(WS_F2))
            if s == KD:
                tok = max(tok, tk["p"])
                kw["mid"] = lambda: self.poll1_check(own=vTA)
            if s >= KD:
                for i in (0, 2):
                    if kq:
                        mem[i].append(kq.pop(0))
            if s == VS:
                mem[2].append(lambda: st_v(0)); mem[3].append(lambda: st_v(1))
                if SP & 2:
                    mem[3].append(lambda: k("s_setprio 0"))
            for _ in range(W2S.count(s)):
                assert s >= 14
                mem[2].append(lambda i=w2a.pop(0): tk.__setitem__("W", self.dma_w2(0, i)))
            if s == PS:
                mem[3].append(lambda: tk.__setitem__("p", self.poll1_issue()))
            if s < 7:
                mats = [(ACA, False, WF, vWR, (s % 3) * 16384, s == 0)]
            elif s < 14:
                mats = [(ACB, True, WF, vWRV, (s - 7) * 8192, s == 7)]
            else:
                mats = [(ACA, False, WF, vWRQ, QPOS[s - 14] * 8192, s == 14)]
            if s == 14:
                k("L_qphase:")
            old = self.step(s, mats, tok, mem=mem, old=old, xread=(s < 7), flush=(s in (13, 20) or (s == 6 and KE_)), **kw)
            if s in (0, 7, 14):
                self.stamp()
            if s == 3:
                self.page("b_1")
        self.stamp()
        kv = kq
        S = [16, 32]; P = lambda n: 48 + 8 * n; QF = 120; VFb = lambda n: 144 + 8 * (n % 4); OA = 176
        KE = self.opt("vbar", 4) if self.opt("w2n0", 0) else 9
        spare = {KE + 3: 208, KE + 4: 216, KE + 5: 240}
        KR = lambda n: spare.get(n, 128 + 8 * (n % 2))
        tK, tV = {}, {}

        def rdK(n, h=None):
            if h in (None, 0):
                k(f"ds_read_b128 {vr(KR(n),4)}, v{vK0} offset:{(8-n)*4096}")
            if h in (None, 1):
                tK[n] = k(f"ds_read_b128 {vr(KR(n)+4,4)}, v{vK1} offset:{(8-n)*4096}")

        def rdV(n, h=None):
            if h in (None, 0):
                k(f"ds_read_b128 {vr(VFb(n),4)}, v{vVA} offset:{(8-n)*4096}")
            if h in (None, 1):
                tV[n] = k(f"ds_read_b128 {vr(VFb(n)+4,4)}, v{vVA} offset:{(8-n)*4096+2048}")

        def mS(n):
            c = vr(CD, 16) if n == 0 else vr(CO, 16) if n == 8 else "0"
            return [(tK, n, f"v_mfma_f32_32x32x16_bf16 {vr(S[n%2],16)}, {vr(KR(n),4)}, {vr(QF,4)}, {c}"),
                    (None, n, f"v_mfma_f32_32x32x16_bf16 {vr(S[n%2],16)}, {vr(KR(n)+4,4)}, {vr(QF+4,4)}, {vr(S[n%2],16)}")]

        def mPV(n):
            c = "0" if n == 0 else vr(OA, 16)
            return [(tV, n, f"v_mfma_f32_32x32x16_bf16 {vr(OA,16)}, {vr(VFb(n),4)}, {vr(P(n),4)}, {c}"),
                    (None, n, f"v_mfma_f32_32x32x16_bf16 {vr(OA,16)}, {vr(VFb(n)+4,4)}, {vr(P(n)+4,4)}, {vr(OA,16)}")]

        def soft(n):
            s = S[n % 2]; p = P(n)
            out = []
            for i in range(8):
                out.append(f"v_exp_f32 v{s+2*i}, v{s+2*i}\nv_exp_f32 v{s+2*i+1}, v{s+2*i+1}")
                if i >= 1:
                    out.append(f"v_cvt_pk_bf16_f32 v{p+i-1}, v{s+2*i-2}, v{s+2*i-1}")
            out.append(f"v_cvt_pk_bf16_f32 v{p+7}, v{s+14}, v{s+15}")
            return out

        def emit(mf, sf, mems, reads=(), fine=False):
            parts = split_by_cost(sf, [1] * max(len(mf), 1))
            reads = list(reads)
            need = [tt[n] for tt, n, m in mf if tt is not None]
            if not fine:
                k.wait(lg=max(need))
            for i, (tt, n, m) in enumerate(mf):
                if fine and tt is not None:
                    k.wait(lg=tt[n])
                k(m)
                last = i == len(mf) - 1
                for _ in range(len(reads) if last else min(1, len(reads))):
                    reads.pop(0)()
                for f in mems.get(i, []) + (mems.get(-1, []) if last else []):
                    f()
                if parts[i]:
                    k(*parts[i])

        def qpack():
            k(f"v_bfi_b32 v{vG}, v{vMA}, v{ACA+12}, v{ACA+8}")
            k(f"v_mul_f32 v{vG}, {hex(f2u(LOG2E))}, v{vG}")
            k(f"v_mov_b32 v{vT0}, {hex(f2u(CSC))}")
            for i in range(16):
                k(f"v_mul_f32 v{ACA+i}, v{vT0}, v{ACA+i}")
            k(f"v_exp_f32 v{vG}, v{vG}")
            k(*self.pack16(ACA, QF))
            k(f"v_and_b32 v{QF+4}, v{vMA}, v{QF+4}", f"v_and_b32 v{QF+5}, v{vMA}, v{QF+5}",
              f"v_and_b32 v{QF+6}, v{vMB}, v{QF+6}", f"v_and_b32 v{QF+7}, v{vMB}, v{QF+7}")
            k(f"v_add_f32 v{vG}, 1.0, v{vG}")
        if KD == 21:
            k.wait(vm=tk["p"])
            self.poll1_check(own=vTA)
            k("s_barrier")
            kq.pop(0)(); kq.pop(0)()
        k(f"v_add_u32 v{vPOLL}, {WS_F2 - WS_F1}, v{vPOLL}")
        qpack()
        while kq:
            kq.pop(0)()
        VI = self.opt("vissue", -1)
        VP = self.opt("vpoll", 0)
        VB = self.opt("vbar", 4)
        K2B = self.opt("k2bar", 0)
        PVN = self.opt("pvper", 2)
        WB_ = self.opt("wbar", 7)
        if VI < 0:
            tk["p"] = self.poll1_issue()
        for _ in range(self.opt("w2k", 3)):
            tk["W"] = self.dma_w2(0, w2a.pop(0))
        self.page("b_2")
        if self.opt("balign", 1) == 1:
            k("L_bpage:")
        wt = tk["K2" if K2B < 0 else "K1"]
        if VF_ == 21:
            wt = max(wt, tk["Vst"])
        if VP < 0:
            wt = max(wt, tk["p"])
        k.wait(vm=wt)
        if VP < 0:
            self.poll1_check()
        k("s_barrier")
        self.stamp()
        rdK(0); rdK(1)
        if VF_ == 21:
            self.set_flag(WS_F2)
        emit(mS(0), [], {-1: [lambda: k("s_mov_b64 exec, 0xfff", f"ds_write_b128 v{vU}, {vr(ONE,4)} offset:{L_VA + 56*16}", "s_mov_b64 exec, -1")]})
        pend = list(range(9)); vread = 0
        vq = [0, 1, 2]
        prio = 3
        KDEAD = KE
        wmid = list(range(4))
        for n in range(9):
            mf = mS(n + 1) if n + 1 < 9 else []
            mems = {0: [], -1: []}
            reads = []
            if n + 2 < 9 and n <= KE:
                reads += [lambda n=n: rdK(n + 2, 0), lambda n=n: rdK(n + 2, 1)]
            if n == KE:
                reads += [lambda m=m: rdK(m) for m in range(n + 3, 9)]
            if n > VB:
                for _ in range(PVN):
                    if pend and pend[0] < n and pend[0] < vread:
                        mf += mPV(pend.pop(0))
                while vread < 9 and vread < pend[0] + PVN:
                    reads += [lambda v=vread: rdV(v, 0), lambda v=vread: rdV(v, 1)]; vread += 1
            assert PVN <= 2
            if self.opt("aprio", 1) and n <= self.opt("apl", 8):
                k(f"s_setprio {max(0, min(prio, self.opt('apl', 8) - n))}"); prio -= 1
            if n > VP and vq:
                mems[0].append(lambda w=vq.pop(0): ld_v(w))
                if len(vq) == 2:
                    mems[-1].append(lambda w=vq.pop(0): ld_v(w))
            elif n > VP or n < VI:
                for i in range(2):
                    if w2a:
                        mems[0].append(lambda i=w2a.pop(0): tk.__setitem__("W", self.dma_w2(0, i)))
            if self.opt("w2mid", 1) and n > VB:
                assert VB >= 4
                for _ in range(self.opt("w2mp", 1)):
                    if wmid:
                        mems.setdefault(2 if len(wmid) % 2 else 0, []).append(lambda i=wmid.pop(0): self.dma_w2_mid(1, i))
            if n == VI:
                mems[-1].append(lambda: tk.__setitem__("p", self.poll1_issue()))
            assert mf
            self.stamp(step=50 + n)
            sf = soft(n)
            if n == 8 and self.opt("pvsplit", 1) and pend == [8]:
                cut = max(i for i, x in enumerate(sf) if x.startswith(f"v_cvt_pk_bf16_f32 v{P(8)+4},")) + 1
                emit(mf, sf[:cut], mems, reads)
                last = mPV(pend.pop(0))
                emit(last[:1], sf[cut:], {})
                k(last[1][2])
            else:
                emit(mf, sf, mems, reads, fine=(n == VB + 1 and self.opt("fine", 1)))
            waits = []
            if n == K2B:
                waits.append(tk["K2"])
            if n == VF_ - 22:
                waits.append(tk["Vst"])
            if n == VP:
                waits.append(tk["p"])
            if n == VB:
                assert not vq
                waits.append(tk["V"])

            if waits or n == KDEAD:
                k.wait(vm=max(waits) if waits else None, lg=tK[8] if n == KDEAD else None)
                if n == VP:
                    self.poll1_check()
                k("s_barrier")
                prio = 3
                if n == VF_ - 22:
                    self.set_flag(WS_F2)
            if n == VB:
                self.stamp()
                while vread < PVN:
                    rdV(vread); vread += 1
        assert K2B <= 2 and self.opt("w2late", 1) and not w2a and not (wmid and self.opt("w2mid", 1))
        while pend:
            n = pend.pop(0)
            while vread <= min(n + 2, 8):
                rdV(vread); vread += 1
            emit(mPV(n), [], {})
        if self.opt("aprio", 1):
            k("s_setprio 0")
        self.stamp()
        k(f"v_subrev_u32 v{vT0}, {hex(f2u(2.0**-60))}, v{OA+12}")
        k(f"v_cmp_lt_u32 vcc, {hex(f2u(2.0**60) - f2u(2.0**-60))}, v{vT0}")
        if self.o.get("force_slow"):
            k("s_mov_b64 vcc, -1")
        k(f"s_cmp_lg_u32 vcc_hi, 0")
        self.rare("s_cbranch_scc1", lambda: self.attn_slow(S[0], P(0), 128, VFb(0), OA, QF))
        if self.opt("cnt3", 1):
            k(f"v_mov_b32 v{vFV}, 0x100")
        self.o_epilogue(OA, False)

    def attn_slow(self, S, P, KF, VF, OA, QF):
        k = self.k
        CD, CO = R16A, R16B
        vM = vT2; vA = vT0; vA2 = vT1
        k(f"s_lshl2_add_u32 s{sT0}, s{sTB}, s{sTT}")
        k(f"s_min_u32 s{sT0}, s{sT0}, 8")
        k(f"s_sub_u32 s{sT1}, 8, s{sT0}")
        k(f"s_mov_b32 s{sNEG}, 0xff800000")
        k(f"v_mov_b32 v{vM}, s{sNEG}")
        for r in range(16):
            k(f"v_xor_b32 v{CD+r}, s{sNEG}, v{CO+r}")
        k(f"v_and_b32 v{vK0}, 0xfff, v{vK0}", f"v_and_b32 v{vK1}, 0xfff, v{vK1}")

        def scores(tag):
            k(f"s_mul_i32 s{sT0}, s{sT2}, {TILE}")
            k(f"s_mul_i32 s{sT3}, s{sHP}, 3584")
            k(f"s_add_u32 s{sT0}, s{sT0}, s{sT3}")
            k(f"s_add_u32 s{sT0}, s{sT0}, s{sKV}")
            k(f"s_add_u32 s{sT0}, s{sT0}, {WS_KB - 8*TILE}")
            k(f"buffer_load_dwordx4 {vr(KF,4)}, v{vK0}, {srd(SRD_WS)}, s{sT0} offen sc1")
            k(f"buffer_load_dwordx4 {vr(KF+4,4)}, v{vK1}, {srd(SRD_WS)}, s{sT0} offen sc1")
            k("s_waitcnt vmcnt(0)")
            k(f"v_mfma_f32_32x32x16_bf16 {vr(S,16)}, {vr(KF,4)}, {vr(QF,4)}, 0")
            k(f"v_mfma_f32_32x32x16_bf16 {vr(S,16)}, {vr(KF+4,4)}, {vr(QF+4,4)}, {vr(S,16)}")
            k("s_nop 15")
            k(f"s_cmp_eq_u32 s{sT2}, 8")
            k(f"s_cbranch_scc0 L_sl_a{tag}")
            for r in range(16):
                k(f"v_add_f32 v{S+r}, v{CD+r}, v{S+r}")
            k(f"L_sl_a{tag}:")
            k(f"s_cmp_eq_u32 s{sT2}, 0")
            k(f"s_cbranch_scc0 L_sl_b{tag}")
            for r in range(16):
                k(f"v_add_f32 v{S+r}, v{CO+r}, v{S+r}")
            k(f"L_sl_b{tag}:")
        k(f"s_mov_b32 s{sT2}, s{sT1}")
        k("L_sl_1:")
        scores("1")
        for r in range(8):
            k(f"v_max3_f32 v{vM}, v{vM}, v{S+2*r}, v{S+2*r+1}")
        k(f"s_add_u32 s{sT2}, s{sT2}, 1")
        k(f"s_cmp_le_u32 s{sT2}, 8")
        k("s_cbranch_scc1 L_sl_1")
        k(f"v_mov_b32 v{vA}, v{vM}")
        k(f"v_permlane32_swap_b32 v{vM}, v{vA}")
        k(f"v_max_f32 v{vM}, v{vM}, v{vA}")
        for r in range(16):
            k(f"v_mov_b32 v{OA+r}, 0")
        k(f"s_mov_b32 s{sT2}, s{sT1}")
        k("L_sl_2:")
        scores("2")
        k(f"s_lshl_b32 s{sT3}, s{sT2}, 12")
        k(f"v_add_u32 v{vA2}, s{sT3}, v{vVA}")
        k(f"ds_read_b128 {vr(VF,4)}, v{vA2}")
        k(f"ds_read_b128 {vr(VF+4,4)}, v{vA2} offset:2048")
        for r in range(16):
            k(f"v_sub_f32 v{S+r}, v{S+r}, v{vM}")
        for r in range(16):
            k(f"v_exp_f32 v{S+r}, v{S+r}")
        k(*self.pack16(S, P))
        k("s_waitcnt lgkmcnt(0)")
        k(f"v_mfma_f32_32x32x16_bf16 {vr(OA,16)}, {vr(VF,4)}, {vr(P,4)}, {vr(OA,16)}")
        k(f"v_mfma_f32_32x32x16_bf16 {vr(OA,16)}, {vr(VF+4,4)}, {vr(P+4,4)}, {vr(OA,16)}")
        k(f"s_add_u32 s{sT2}, s{sT2}, 1")
        k(f"s_cmp_le_u32 s{sT2}, 8")
        k("s_cbranch_scc1 L_sl_2")
        k("s_nop 15")

    def setup_a(self):
        g = [
            f"v_and_b32 v{vT0}, 3, v{vL}", f"v_bfe_u32 v{vT1}, v{vL}, 4, 1", f"v_lshl_add_u32 v{vT0}, v{vT1}, 2, v{vT0}",
            f"v_bfe_u32 v{vT1}, v{vL}, 2, 2", f"v_lshrrev_b32 v{vT2}, 5, v{vL}", f"v_lshl_add_u32 v{vT1}, v{vT2}, 2, v{vT1}",
            f"v_mul_u32_u24 v{vPA}, 56, v{vT1}", f"v_lshl_add_u32 v{vPA}, v{vT0}, 3, v{vPA}",
            f"s_mul_i32 s{sT0}, s{sHH}, 1568", f"s_add_u32 s{sT0}, s{sT0}, {L_SP}", f"v_add_u32 v{vPA}, s{sT0}, v{vPA}",
            f"s_and_b32 s{sT0}, s{sW_}, 1", f"s_lshl_b32 s{sT0}, s{sT0}, 3", f"v_add_u32 v{vT0}, s{sT0}, v{vT0}",
            f"v_and_b32 v{vT2}, 5, v{vT1}", f"v_xor_b32 v{vT0}, v{vT2}, v{vT0}",
            f"v_and_b32 v{vT2}, 8, v{vL}", f"v_xor_b32 v{vT0}, v{vT2}, v{vT0}",
            f"v_lshlrev_b32 v{vT0}, 3, v{vT0}", f"v_lshl_add_u32 v{vT0}, v{vT1}, 7, v{vT0}",
            f"s_bfe_u32 s{sT0}, s{sW_}, 0x10001", f"s_lshl_b32 s{sT1}, s{sT0}, 14", f"v_add_u32 v{vA1}, s{sT1}, v{vT0}",
            f"v_xor_b32 v{vA2}, 16, v{vA1}",
            f"s_lshl_b32 s{sT1}, s{sT0}, 13", f"v_add_u32 v{vA3}, s{sT1}, v{vL16}",
            f"s_lshl_b32 s{sT1}, s{sHP}, 1", f"s_add_u32 s{sT0}, s{sT0}, s{sT1}", f"s_lshl_b32 s{sT0}, s{sT0}, 4",
            f"s_add_u32 s{sT0}, s{sT0}, s{sTB}", f"s_lshl_b32 s{sT0}, s{sT0}, 1", f"s_and_b32 s{sT1}, s{sW_}, 1",
            f"s_add_u32 s{sT0}, s{sT0}, s{sT1}", f"s_mul_i32 s{sT0}, s{sT0}, {self.SP}", f"s_add_u32 s{sKV}, s{sT0}, {WS_PART}",
            f"s_lshl_b32 s{sT0}, s{sHP}, 1", f"s_add_u32 s{sT0}, s{sT0}, s{sHH}", f"s_lshl_b32 s{sT0}, s{sT0}, 5",
            f"s_lshr_b32 s{sT1}, s{sTT}, 1", f"s_add_u32 s{sT0}, s{sT0}, s{sT1}", f"s_mul_i32 s{sT0}, s{sT0}, {self.SP}",
            f"s_and_b32 s{sT1}, s{sTT}, 1", f"s_lshl_b32 s{sT1}, s{sT1}, 10",
            f"s_add_u32 s{sT0}, s{sT0}, s{sT1}", f"s_add_u32 s{sKL}, s{sT0}, {WS_PART}",
            f"v_and_b32 v{vT0}, 5, v{vL}", f"v_bfe_u32 v{vT1}, v{vL}, 1, 1", f"v_lshl_or_b32 v{vT0}, v{vT1}, 3, v{vT0}",
            f"v_bfe_u32 v{vT1}, v{vL}, 3, 1", f"v_lshl_or_b32 v{vT0}, v{vT1}, 1, v{vT0}",
            f"v_lshrrev_b32 v{vT1}, 5, v{vL}", f"v_xor_b32 v{vT0}, v{vT1}, v{vT0}", f"v_lshlrev_b32 v{vT0}, 3, v{vT0}",
            f"v_and_b32 v{vT1}, 31, v{vL}", f"v_lshl_add_u32 v{vT0}, v{vT1}, 7, v{vT0}",
            f"s_lshl_b32 s{sT0}, s{sW_}, 12", f"v_add_u32 v{vPW}, s{sT0}, v{vT0}",
            f"v_add_u32 v{vVFW}, s{sW2K}, v{vL16}",
            f"v_add_u32 v{vKX0}, s{sW1K}, v{vL16}",
            f"s_lshl_b32 s{sT0}, s{sHH}, 12", f"v_add_u32 v{vKX1}, s{sT0}, v{vL16}",
            f"v_and_b32 v{vT0}, 15, v{vL}", f"v_lshlrev_b32 v{vT0}, 7, v{vT0}",
            f"s_lshl_b32 s{sT0}, s{sHP}, 11", f"v_mov_b32 v{vP2}, s{sF1}" if self.opt("cnt1", 1) else f"v_add_u32 v{vP2}, s{sT0}, v{vT0}",
            f"v_mov_b32 v{vC}, {hex(f2u(LOG2E))}", f"v_and_b32 v{vLF}, 1.0, v{vLO}",
            f"v_and_b32 v{vT0}, 31, v{vL}", f"v_lshrrev_b32 v{vT1}, 5, v{vL}", f"v_lshlrev_b32 v{vT1}, 2, v{vT1}",
            f"v_sub_u32 v{vT0}, v{vT0}, v{vT1}", f"v_mov_b32 v{vT1}, 0x3f80", f"v_mov_b32 v{vT2}, 0x3f800000"]
        for p in range(4):
            c0 = (2 * p & 3) + 8 * (2 * p >> 2)
            g += [f"v_cmp_eq_u32 vcc, {c0}, v{vT0}", f"v_cndmask_b32 v{SEL+p}, 0, v{vT1}, vcc",
                  f"v_cmp_eq_u32 vcc, {c0+1}, v{vT0}", f"v_cndmask_b32 v{SEL+p}, v{SEL+p}, v{vT2}, vcc"]
        return g

    def pmfma(self):
        P = R16A
        return [f"v_mfma_f32_32x32x16_bf16 {vr(P,16)}, {vr(WPH,4)}, {vr(F8,4)}, 0\n"
                f"v_mfma_f32_32x32x16_bf16 {vr(P,16)}, {vr(WPH+4,4)}, {vr(F8+4,4)}, {vr(P,16)}"]

    def fm_sums(self, P, E, i):
        sp, sn = vU, vU + 2
        if i == 0:
            return []
        if i == 1:
            return [f"v_add_f32 v{sp}, v{E}, v{E+1}", f"v_add_f32 v{sn}, v{P}, v{P+1}"]
        if i < 12:
            return [f"v_add_f32 v{sp}, v{sp}, v{E+i}", f"v_add_f32 v{sn}, v{sn}, v{P+i}"]
        return [f"v_fmac_f32 v{sp}, v{vLF}, v{E+i}", f"v_fmac_f32 v{sn}, v{vLF}, v{P+i}"]

    def featmap(self, tag, outp, outn, wr=None):
        P, E = R16A, R16B
        sp, sn = vU, vU + 2
        g = []
        for i in range(17):
            if i < 16:
                g += [f"v_exp_f32 v{E+i}, v{P+i}", f"v_exp_f32_e64 v{P+i}, -v{P+i}"]
            if i >= 1:
                g += self.fm_sums(P, E, i - 1)
        g += [f"v_permlane32_swap_b32 v{sp}, v{sn}",
              f"v_add_f32 v{sp}, v{sp}, v{sn}"]
        chk = (f"v_subrev_u32 v{sn}, {hex(f2u(2.0**-60))}, v{sp}\n"
               f"v_cmp_lt_u32 vcc, {hex(f2u(2.0**120) - f2u(2.0**-60))}, v{sn}\n")
        if self.o.get("force_slow"):
            chk += "s_mov_b64 vcc, -1\n"
        chk += f"s_cbranch_vccnz L_fms_{tag}\nL_fmr_{tag}:"
        g += [chk, f"v_rcp_f32 v{vB}, v{sp}", f"v_mov_b32 v{vB+1}, v{vB}",
              f"v_permlane32_swap_b32 v{vB}, v{vB+1}"]
        for ft, (src, dst) in enumerate(((E, outp), (P, outn))):
            for m in range(4):
                g += [f"v_mul_f32 v{src+4*m+i}, v{vB+ft}, v{src+4*m+i}" for i in range(4)]
                g += [f"v_cvt_pk_bf16_f32 v{dst+2*m+i}, v{src+4*m+2*i}, v{src+4*m+2*i+1}" for i in range(2)]
                if wr:
                    g.append(wr(ft, m, dst + 2 * m))
            if not wr:
                g += self.zero_pad(dst)
        return g

    def fm_slow(self, tag):
        k = self.k
        P, E = R16A, R16B
        t = vU
        mx, mn = t, t + 1
        k(f"L_fms_{tag}:")
        k(*self.pmfma())
        for i in range(4):
            k(f"v_bfi_b32 v{P+12+i}, v{vLO}, v{P+12+i}, v{P+8}")
        k(f"v_max3_f32 v{mx}, v{P}, v{P+1}, v{P+2}", f"v_min3_f32 v{mn}, v{P}, v{P+1}, v{P+2}")
        for i in range(6):
            k(f"v_max3_f32 v{mx}, v{mx}, v{P+3+2*i}, v{P+4+2*i}", f"v_min3_f32 v{mn}, v{mn}, v{P+3+2*i}, v{P+4+2*i}")
        k(f"v_max_f32 v{mx}, v{mx}, v{P+15}", f"v_min_f32 v{mn}, v{mn}, v{P+15}",
          f"v_mov_b32 v{t+2}, v{mx}", f"v_mov_b32 v{t+3}, v{mn}",
          f"v_permlane32_swap_b32 v{mx}, v{t+2}", f"v_permlane32_swap_b32 v{mn}, v{t+3}",
          f"v_max_f32 v{vB}, v{mx}, v{t+2}", f"v_min_f32 v{vB+1}, v{mn}, v{t+3}")
        for i in range(16):
            k(f"v_sub_f32 v{E+i}, v{P+i}, v{vB}", f"v_sub_f32 v{P+i}, v{vB+1}, v{P+i}")
        for i in range(16):
            k(f"v_exp_f32 v{E+i}, v{E+i}", f"v_exp_f32 v{P+i}, v{P+i}")
        for i in range(16):
            k(*self.fm_sums(P, E, i))
        k(f"v_permlane32_swap_b32 v{t}, v{t+2}", f"v_add_f32 v{t}, v{t}, v{t+2}")
        k(f"s_branch L_fmr_{tag}")

    def path_a(self):
        k = self.k
        P, E = R16A, R16B
        self.ubase = L_WR
        k("L_path_a:")
        assert self.opt("cpro", 1)
        k(f"v_add_u32 v{vWV}, 1792, v{vWQ}")
        if not self.opt("cpro", 1):
            self.setup_early()
            self.touch_early(self.opt("atouch", 0), 5)
            k("s_barrier")
            self.dma1(1, 0)
            self.setup_common()
        self.tlb_touch(True)
        k(f"v_and_b32 v{vT0}, 3, v{vL}", f"v_bfe_u32 v{vT2}, v{vL}, 4, 1", f"v_lshl_add_u32 v{vT0}, v{vT2}, 2, v{vT0}",
          f"v_add_u32 v{vT2}, 1, v{vT0}", f"v_lshrrev_b32 v{vT2}, 3, v{vT2}",
          f"s_mul_i32 s{sT0}, s{sHH}, 56", f"v_lshl_add_u32 v{vT0}, v{vT0}, 3, s{sT0}",
          f"s_xor_b32 s{sT0}, s{sHH}, 1", f"s_lshl_b32 s{sT0}, s{sT0}, 6", f"v_mul_u32_u24 v{vT2}, s{sT0}, v{vT2}",
          f"v_add_u32 v{vT0}, v{vT2}, v{vT0}")
        self.tr_addr(vWR, L_KR)
        self.stamp(step=-2)
        k(*self.setup_a())
        self.stamp(step=-1)
        if self.opt("visp", 0) == 0:
            self.visits("a", ["a_1", "a_2", "ab_f"])
        self.dma1(1, 1)
        self.dma1(1, 2)
        if self.opt("visp", 0) == 1:
            self.visits("a", ["a_1", "a_2", "ab_f"])
        RA = self.opt("ra", 3)
        ustep = lambda u: 0 if (u == 0 and self.opt("av0", 0)) else max(5, 7 + u - RA)

        def wphi_read():
            for s in range(2):
                for e in range(2):
                    k(f"ds_read_b64_tr_b16 {vr(WPH+4*s+2*e,2)}, v{vPA} offset:{(16*s+8*e)*56}")
        wzero = [f"v_and_b32 v{vT0}, 31, v{vL}", f"v_subrev_u32 v{vT0}, 28, v{vT0}", f"v_ashrrev_i32 v{vT0}, 31, v{vT0}"]
        wzero += [f"v_and_b32 v{WPH+i}, v{vT0}, v{WPH+i}" for i in range(8)]

        if self.opt("lfold", 0):
            for i in range(8):
                wzero += [f"v_lshlrev_b32 v{vT1}, 16, v{WPH+i}", f"v_and_b32 v{vT2}, 0xffff0000, v{WPH+i}",
                          f"v_mul_f32 v{vT1}, v{vC}, v{vT1}", f"v_mul_f32 v{vT2}, v{vC}, v{vT2}",
                          f"v_cvt_pk_bf16_f32 v{WPH+i}, v{vT1}, v{vT2}"]

        def scale_pack():
            if self.opt("lfold", 0):
                return self.pack16(ACA, F8) + self.zero_pad(F8)
            g = []
            for i in range(8):
                g += [f"v_mul_f32 v{ACA+2*i}, v{vC}, v{ACA+2*i}", f"v_mul_f32 v{ACA+2*i+1}, v{vC}, v{ACA+2*i+1}"]
                if i >= 1:
                    g.append(f"v_cvt_pk_bf16_f32 v{F8+i-1}, v{ACA+2*i-2}, v{ACA+2*i-1}")
            return g + [f"v_cvt_pk_bf16_f32 v{F8+7}, v{ACA+14}, v{ACA+15}"] + self.zero_pad(F8)
        PWR = [vPW, 2, 3, 6, 7, 8, 9, 159]
        xo = [f"v_xor_b32 v{PWR[q]}, {q*16}, v{vPW}" for q in range(1, 8)]
        ones = [f"v_mov_b32 v{vU+i}, s{sONES}" for i in range(4)]
        ones += ["s_mov_b32 exec_lo, 0x10000000", "s_mov_b32 exec_hi, 0x10000000",
                 f"ds_write_b128 v{vVFW}, {vr(vU,4)} offset:{L_VF}", f"ds_write_b128 v{vVFW}, {vr(vU,4)} offset:{L_VF+1024}",
                 "s_mov_b64 exec, -1"]
        wr = lambda ft, m, src: f"ds_write_b64 v{PWR[ft*4+m]}, {vr(src,2)} offset:{L_PHI}"
        parts = split_by_cost(self.featmap("k", F8, E, wr), [1] * 6)
        FC = (252, 253, 158, vTA, vG)
        fcs = split_by_cost(wzero[11:] + self.final_consts(*FC), [1] * 3)
        old = []
        for s in range(14):
            mem = {i: [] for i in range(4)}
            end = []
            kw = {}
            if s + 2 <= 6:
                for p in range(3):
                    mem[1 + p].append(lambda p=p: self.dma1(s + 2, p))
            for n, u in enumerate(u for u in range(14) if ustep(u) == s):
                mem[min(3, 2 + n) if s else 0].append(lambda u=u: self.dma_unit(u))
            if s == 0:
                mem[1] = [self.gate_load, wphi_read] + mem[1]
            if s == 1:
                kw = dict(bg=wzero[:11] + self.gate_put(), w=(0, 0, 1, 0))
            if 2 <= s <= 4:
                kw = dict(bg=fcs[s - 2])
            if s == 5:
                kw = dict(bg=self.w2_addr(vD2) + self.w2_rot() + self.flag_setup() + ones[:4])
            if s == 6:
                mem[1].append(lambda: k(f"v_add_u32 v{vWR}, {L_WR - L_KR}, v{vWR}"))
                mem[2].insert(0, lambda: k(*ones[4:]))
                kw = dict(bg=xo, w=(0, 1, 1, 0))
            if s == 7:
                kw = dict(bg=scale_pack() + self.pmfma(), w=[int(c) for c in str(self.opt("w7", 10011))[1:]], prio=self.opt("p7", 0))
            if s >= 8:
                kw = dict(bg=parts[s - 8], prio=self.opt("vprio", 1))
            if s == 10:
                mem[2].insert(0, self.ann_issue)
            if s < 7:
                old = self.step(s, [(ACA, False, WF, vWR, (s % 3) * 16384, s == 0)], self.tokx[s], mem=mem, end=end, old=old, xread=True, **kw)
            else:
                old = self.step(s, [(ACB, True, WF, vWR, (s - 7) * 8192, s == 7)], self.toku[s - 7], mem=mem, end=end, old=old,
                                flush=(s == 13), **kw)
            if s in (0, 7):
                self.stamp()
            if s == 3:
                self.page("a_1")
        self.stamp(step=60)
        NQ = self.opt("aqn", 2)
        rem = [u for u in range(7, 14) if u not in self.toku]
        if NQ < 0:
            while len(rem) > 1:
                self.dma_unit(rem.pop(0))
        self.stamp(step=61)
        k(f"s_mov_b32 s{SRD_Z}, s{SRD_WS}", f"s_mov_b32 s{SRD_Z+1}, s{SRD_WS+1}", f"s_mov_b32 s{SRD_Z+2}, 0")
        for h in range(2):
            k(*self.pack16(ACB, P)[4 * h:4 * h + 4])
            k("s_mov_b32 exec_lo, 0xefffffff", "s_mov_b32 exec_hi, 0xefffffff")
            k(f"ds_write_b128 v{vVFW}, {vr(P+4*h,4)} offset:{L_VF+1024*h}")
            k("s_mov_b64 exec, -1")
        self.stamp(step=62)
        ABAR = [int(c, 36) for c in str(self.opt("abar", "ehj"))]
        k.wait(vm=self.toku[min(ABAR) - 8] if min(ABAR) > 14 else None, lg=0)
        k("s_barrier")
        self.stamp()
        self.stamp(step=63)
        NWB = self.opt("aw2b", 0)
        DP = self.opt("dpart", 1)

        mine = [rem.pop(0) for _ in range(max(NQ, 0))]
        NOPS = max(2 * len(mine), 2 + DP)
        null = lambda: k(f"buffer_store_dword v{F8}, off, {srd(SRD_Z)}, 0 sc1")

        def other():
            k(f"v_subrev_u32 v{vT0}, {32*2688}, v{vWQ}")
            k(f"s_mov_b64 exec, s[{sMASK}:{sMASK+1}]")
            for u in mine:
                for h in range(2):
                    k(f"s_add_u32 m0, s{sW1K}, {L_WR + (u - 7) * 8192 - 4096 * h}")
                    k(f"buffer_load_dwordx4 v{vT0 if h else vWQ}, {srd(SRD_W)}, s{sWO + u - 7} offen lds")
            k("s_mov_b64 exec, -1")
            for _ in range(NOPS - 2 * len(mine)):
                null()
            for i in range(NWB):
                self.dma_w2(1, i)
            k("s_branch L_kvdone")
        for i, u in enumerate(mine):
            self.toku[u] = ("vm", k.nvm + 2 * i + 2)
        k(f"s_cmp_eq_u32 s{sHH}, 0")
        self.rare("s_cbranch_scc0", other)
        st = k.state()
        toks = []

        def rd(n):
            b = (n % 4) * 4
            k(f"ds_read_b64_tr_b16 {vr(P+b,2)}, v{vA1} offset:{L_PHI + n*2048}")
            k(f"ds_read_b64_tr_b16 {vr(P+b+2,2)}, v{vA2} offset:{L_PHI + n*2048 + 1024}")
            toks.append(k(f"ds_read_b128 {vr(E+b,4)}, v{vA3} offset:{L_VF + n*1024}"))
        for n in range(4):
            rd(n)
        k(f"v_lshrrev_b32 v{vT1}, 1, v{vL16}")
        for n in range(8):
            k.wait(lg=toks[n])
            b = (n % 4) * 4
            k(f"v_mfma_f32_32x32x16_bf16 {vr(ACB,16)}, {vr(P+b,4)}, {vr(E+b,4)}, {'0' if n == 0 else vr(ACB,16)}")
            if n + 4 < 8:
                rd(n + 4)
        self.stamp(step=64)
        for h in range(2):
            k(*self.pack16(ACB, F8)[4 * h:4 * h + 4])
            if h and DP:
                k("s_mov_b32 exec_hi, 0")
            tokpart = k(f"buffer_store_dwordx4 {vr(F8+4*h,4)}, v{vL16}, {srd(SRD_WS)}, s{sKV} offen offset:{1024*h} sc1")
        if DP:
            k("s_not_b64 exec, exec")
            tokpart = k(f"buffer_store_dwordx2 {vr(F8+4,2)}, v{vT1}, {srd(SRD_WS)}, s{sKV} offen offset:{1536 - 256} sc1")
            k("s_mov_b64 exec, -1")
        for _ in range(NOPS - 2 - DP):
            null()
        for i in range(NWB):
            self.dma_w2(1, i)
        self.page("a_2")
        k("L_kvdone:")
        self.stamp(step=65)
        vPL = vPW
        pl = [f"v_min_u32 v{vT0}, 62, v{vL}", f"v_lshl_add_u32 v{vT0}, v{vT0}, 3, 64", f"v_add_u32 v{vT0}, 192, v{vT0}",
              f"s_and_b32 s{sT0}, s{sW_}, 1\ns_sub_u32 s{sT0}, s{sT0}, 1\nv_or_b32 v{vT1}, s{sT0}, v{vLO}",
              f"v_bfi_b32 v{vPL}, v{vT1}, v{vL16}, v{vT0}"]
        PF = self.opt("pflag", 17)
        PP = self.opt("ppoll", 20)
        NWA = self.opt("aw2a", 5)
        w2 = [(1, i, True) for i in range(NWB, 7)] + ([] if self.opt("w2late", 1) else [(0, i, False) for i in range(7)])
        if self.opt("w2late", 1):
            NWA = 7
        tk = {}
        old = []
        assert PF in ABAR
        for s in range(14, 21):
            mem = {i: [] for i in range(4)}
            tok = None
            if s in ABAR:
                tok = max(self.toku[x - 7] for x in range(s, min([y for y in ABAR if y > s] + [21])))
            if rem:
                mem[0].append(lambda u=rem.pop(0): self.dma_unit(u))
            if s == 14:
                mem[3].append(self.ann_check)
            if s == PF:
                tok = max(tok, tokpart)
                mem[0].append(lambda: self.set_flag(WS_F1))
            W2A = [int(c) for c in str(self.opt("aw2s", 1012210))]
            for sl in range(W2A[s - 14]):
                if len(w2) > 7 - NWA and (w2[0][0] == 1 or w2[0][1] <= s - 15):
                    mem[1 + sl].append(lambda a=w2.pop(0): self.dma_w2(*a))
            if s == PP:
                mem[self.opt("pps", 3)].append(lambda: tk.__setitem__("p", self.poll1_issue()))
            old = self.step(s, [(ACA, False, WF, vWR, (s - 14) * 8192, s == 14)], tok, mem=mem, old=old, flush=(s == 20),
                            bg=[f"v_mov_b32 v{d}, v{c}" for d, c in zip((vFA, vFB, vFO, vFP, vFS), FC)] if s == 16 else pl if s == 18 else None)
        self.stamp()
        pre = [f"v_mul_f32 v{vG}, {hex(f2u(-LOG2E))}, v{ACA+12}"] + scale_pack() + self.pmfma()
        pre += [f"v_exp_f32 v{vG}, v{vG}", f"v_add_f32 v{vG}, 1.0, v{vG}"]
        if self.opt("apre", 1):
            k(*pre); pre = []
        fq_all = self.featmap("q", 16, 24)
        npre = self.opt("fqpre", 0)
        if npre:
            k(*fq_all[:npre])
        if "p" not in tk:
            tk["p"] = self.poll1_issue()
        k.wait(vm=tk["p"])
        self.poll1_check(need=16 if self.opt("cnt1", 1) else 1)
        k("s_barrier")
        self.stamp()
        ST = 48
        PHP, PHN = 16, 24
        fq = pre + fq_all[npre:]
        toks = []
        NA = self.opt("pahead", 4)

        def ldP(t):
            G = self.opt("pgrp", 4)
            if t % G == 0:
                k(f"s_add_u32 s{sT2}, s{sTB}, {t//G}", f"s_and_b32 s{sT2}, s{sT2}, {16//G - 1}")
                k(f"s_mul_i32 s{sT2}, s{sT2}, {G*2*self.SP}", f"s_add_u32 s{sT2}, s{sT2}, s{sKL}")
            else:
                k(f"s_add_u32 s{sT2}, s{sT2}, {2*self.SP}")
            toks.append(k(f"buffer_load_dwordx4 {vr(ST+4*t,4)}, v{vPL if DP else vL16}, {srd(SRD_WS)}, s{sT2} offen sc1"))
        if self.opt("gprio", 0):
            k("s_setprio 3")
        for t in range(NA):
            ldP(t)
        am = list(range(self.opt("amid", 2))) if self.opt("w2mid", 1) else []
        NI = self.opt("pqn", 10)
        chunks = split_by_cost(fq, [self.opt("pq0", 7)] + [1] * NI)
        k(*chunks[0])
        self.stamp()
        for t in range(16):
            if self.opt("gprio", 0) and t in (0, 4, 8):
                k(f"s_setprio {2 - t // 4}")
            k.wait(vm=toks[t])
            k(f"v_mfma_f32_32x32x16_bf16 {vr(ACB,16)}, {vr(SEL,4)}, {vr(ST+4*t,4)}, {'0' if t == 0 else vr(ACB,16)}")
            if t + NA < 16:
                ldP(t + NA)
            elif w2:
                self.dma_w2(*w2.pop(0))
            elif am:
                self.dma_w2_mid(0, am.pop(0))
            if t < NI and chunks[t + 1]:
                k(*chunks[t + 1])
        while w2:
            self.dma_w2(*w2.pop(0))
        assert not am
        self.stamp(step=66)
        for i in range(4):
            k(f"v_cvt_pk_bf16_f32 v{F8+i}, v{ACB+2*i}, v{ACB+2*i+1}")
        k(f"ds_write_b128 v{vKX0}, {vr(F8,4)} offset:{L_KVX}")
        k("s_waitcnt lgkmcnt(0)")
        k("s_barrier")
        self.stamp(step=67)
        toks = [k(f"ds_read_b128 {vr(ST+4*n,4)}, v{vKX1} offset:{L_KVX + n*1024}") for n in range(4)]
        for n in range(4):
            k.wait(lg=toks[n])
            k(f"v_mfma_f32_32x32x16_bf16 {vr(ACA,16)}, {vr(ST+4*n,4)}, {vr(PHP+4*n,4)}, {'0' if n == 0 else vr(ACA,16)}")
        self.stamp()
        self.stamp(step=68)
        self.o_epilogue(ACA, True)

    def final_consts(self, vFA, vFB, vFO, vFP, vFS):
        g = [
            f"v_bfe_u32 v{vT0}, v{vL}, 2, 2", f"v_and_b32 v{vT1}, 3, v{vL}", f"v_lshlrev_b32 v{vT1}, 3, v{vT1}",
            f"v_lshl_add_u32 v{vT1}, v{vT0}, 7, v{vT1}",
            f"s_mul_i32 s{sT0}, s{sHH}, {8*3584}\nv_add_u32 v{vFA}, s{sT0}, v{vT1}",
            f"v_lshrrev_b32 v{vT0}, 1, v{vT0}", f"s_lshl_b32 s{sT0}, s{sHH}, 1\nv_xor_b32 v{vT0}, s{sT0}, v{vT0}",
            f"v_bfe_u32 v{vT1}, v{vL}, 4, 1", f"v_lshlrev_b32 v{vT1}, 1, v{vT1}", f"v_xor_b32 v{vT0}, v{vT1}, v{vT0}",
            f"v_lshlrev_b32 v{vFB}, 5, v{vT0}",
            f"v_and_b32 v{vT0}, 15, v{vL}", f"s_and_b32 s{sT0}, s{sTT}, 1\ns_lshl_b32 s{sT0}, s{sT0}, 4\nv_add_u32 v{vFO}, s{sT0}, v{vT0}",
            *([f"s_mul_i32 s{sT0}, s{sRB}, 7\ns_add_u32 s{sT0}, s{sT0}, s{sCB}\ns_lshl_b32 s{sT0}, s{sT0}, 7\ns_add_u32 s{sT0}, s{sT0}, {WS_F3}\nv_mov_b32 v{vFP}, s{sT0}"]
              if self.opt("cnt3", 1) else [
            f"v_and_b32 v{vT0}, 15, v{vL}", f"v_xor_b32 v{vT0}, {8 * self.opt('first', 0)}, v{vT0}",
            f"v_lshlrev_b32 v{vT0}, 11, v{vT0}",
            f"s_lshr_b32 s{sT0}, s{sRB}, 1\ns_lshl_b32 s{sT0}, s{sT0}, 7\ns_add_u32 s{sT0}, s{sT0}, {WS_F3}\nv_add_u32 v{vFP}, s{sT0}, v{vT0}",
            ]),
            f"v_and_b32 v{vFS}, 15, v{vL}",
            f"s_lshl_b32 s{sT0}, s{sRB}, 6\ns_lshl_b32 s{sT1}, s{sTT}, 4\ns_add_u32 s{sT0}, s{sT0}, s{sT1}\nv_add_u32 v{vFS}, s{sT0}, v{vFS}",
            f"v_mul_u32_u24 v{vFS}, 896, v{vFS}",
            f"v_bfe_u32 v{vT0}, v{vL}, 4, 1", f"v_lshl_add_u32 v{vFS}, v{vT0}, 5, v{vFS}",
            f"v_lshrrev_b32 v{vT0}, 5, v{vL}", f"v_lshl_add_u32 v{vFS}, v{vT0}, 4, v{vFS}",
            f"s_lshl_b32 s{sT0}, s{sCB}, 7\ns_lshl_b32 s{sT1}, s{sHH}, 6\ns_add_u32 s{sT0}, s{sT0}, s{sT1}\nv_add_u32 v{vFS}, s{sT0}, v{vFS}"]
        return g

    def final_peek(self):
        k = self.k
        l = self.lab("pk")
        k(f"s_cmp_eq_u32 s{sW_}, 1")
        k(f"s_cbranch_scc0 {l}")
        k.uncounted(f"buffer_load_dword v{vPV}, v{vFP}, {srd(SRD_WS)}, 0 offen sc1")
        k(f"{l}:")

    def final_stage(self):
        k = self.k
        FIRST = self.opt("first", 0)
        AA = 16
        OAD = 32
        NA = self.opt("oahead", 5)
        NO = NA + 1
        OF = lambda n: 36 + 4 * (n % NO)
        ACC = [36 + 4 * NO] * 2
        NB = (254 - ACC[0] - 16) // 16
        WB = lambda n: ACC[0] + 16 + 16 * (n % NB)
        sQ, sD = sWO, sWO + 2
        sM = sCB
        tw = {}
        k(f"s_cmp_ge_u32 s2, 224")
        k(f"s_cbranch_scc0 L_fin")
        k("s_waitcnt vmcnt(0) ; spin")
        k("s_barrier")
        st = k.state()
        self.set_flag(WS_F3)
        k.restore(st)
        k("s_endpgm ; spin")
        k("L_fin:")
        self.stamp(step=100)
        tokO = ("vm", k.nvm)
        k(f"s_mul_i32 s{sT0}, s{sBR}, {L_W2A - L_W2B}", f"s_add_u32 s{sT1}, s{sT0}, {L_W2B}")
        k(f"s_lshl_b32 s{sD}, s{sT0}, 1", f"s_sub_u32 s{sD}, {L_W2A - L_W2B}, s{sD}")
        k(f"s_cmp_eq_u32 s{sBR}, 0", f"s_cselect_b32 s{sW2B}, s{sW2B}, s{sW2B+1}")
        def w2o(i):
            if self.opt("w2mid", 1):
                k(f"s_add_u32 m0, s{sW2B}, {i*8192}")
                k(f"s_mov_b32 s{sT3}, {i*64*896}")
            else:
                k(f"s_add_u32 m0, s{sXO+i}, s{sW2B}")
                k(f"s_mul_i32 s{sT3}, s{sXO+i}, 7")
            return k(f"buffer_load_dwordx4 v{vD2}, {srd(SRD_A if FIRST else SRD_B)}, s{sT3} offen lds")
        wq = list(range(3 if self.opt("w2mid", 1) else 7))
        k(f"v_add3_u32 v{vFA}, v{vFA}, v{vFB}, s{sT1}")
        k(f"v_lshrrev_b32 v{vT0}, 4, v{vL}")
        k(f"v_lshrrev_b32 v{vT1}, 5, v{vL}", f"v_and_b32 v{vT2}, 1, v{vT0}")
        k(f"v_mul_u32_u24 v{AA}, 3584, v{vT1}", f"v_lshl_add_u32 v{AA}, v{vT2}, 9, v{AA}", f"v_add_u32 v{AA}, v{AA}, v{vFA}")
        k(f"v_lshlrev_b32 v{AA+1}, 6, v{vT1}", f"v_xor_b32 v{AA}, v{AA+1}, v{AA}")
        k(f"v_mul_u32_u24 v{AA+4}, 3584, v{vT0}", f"v_add_u32 v{AA+4}, v{AA+4}, v{vFA}")
        k(f"v_lshl_or_b32 v{OAD+2}, v{vT0}, 1, v{vT2}", f"v_xor_b32 v{OAD+3}, 1, v{OAD+2}")
        k(f"v_mul_u32_u24 v{AA+8}, 3584, v{OAD+2}", f"v_mul_u32_u24 v{AA+12}, 3584, v{OAD+3}")
        k(f"v_add_u32 v{AA+12}, v{AA+12}, v{vFA}", f"v_xor_b32 v{vFA}, 64, v{vFA}", f"v_add_u32 v{AA+8}, v{AA+8}, v{vFA}")
        for t in range(4):
            for j in range(1, 4):
                k(f"v_xor_b32 v{AA+4*t+j}, {32*j}, v{AA+4*t}")
        for i in range(self.opt("w2n0", 0)):
            tokW = w2o(wq.pop(0))
        self.stamp(step=101)
        k.wait(vm=tokO)
        self.stamp(step=102)
        k("s_barrier")
        self.set_flag(WS_F3)
        self.stamp()
        self.stamp(step=103)

        def rdW(n, jjs=range(4)):
            p, i = divmod(n, 7)
            if n == 7 and jjs[0] == 0:
                for j in range(16):
                    k(f"v_add_u32 v{AA+j}, s{sD}, v{AA+j}")
            for jj in jjs:
                d = WB(n) + 4 * jj
                if i < 4:
                    a1 = a2 = AA + jj; o1 = 7168 * i; o2 = o1 + 1024
                elif i < 6:
                    a1 = a2 = AA + 4 + jj; o1 = 14336 * (i - 4) + 2048; o2 = o1 + 1024
                else:
                    a1, a2 = AA + 8 + jj, AA + 12 + jj; o1 = o2 = 2560
                if self.opt("x_nord", 0) and n >= 7:
                    tw[n] = ("lg", k.nlg)
                    continue
                k(f"ds_read_b64_tr_b16 {vr(d,2)}, v{a1} offset:{o1}")
                tw[n] = k(f"ds_read_b64_tr_b16 {vr(d+2,2)}, v{a2} offset:{o2}")
        for i in range(self.opt("w2n1", 3)):
            if wq:
                tokW = w2o(wq.pop(0))
        amid = list(range(self.opt("amid", 2), 4)) if self.opt("w2mid", 1) else []
        k(f"v_mul_u32_u24 v{OAD}, {self.SO}, v{vT1}", f"v_lshl_add_u32 v{OAD}, v{vT2}, 9, v{OAD}", f"v_lshl_add_u32 v{OAD}, v{vFO}, 4, v{OAD}")
        k(f"v_mul_u32_u24 v{OAD+1}, {self.SO}, v{vT0}", f"v_lshl_add_u32 v{OAD+1}, v{vFO}, 4, v{OAD+1}")
        k(f"v_lshlrev_b32 v{vFO}, 3, v{vFO}")
        k(f"s_movk_i32 s{sT0}, {self.SO}")
        k(f"v_mad_u32_u24 v{OAD+2}, v{OAD+2}, s{sT0}, v{vFO}", f"v_mad_u32_u24 v{OAD+3}, v{OAD+3}, s{sT0}, v{vFO}")
        k(f"s_lshr_b32 s{sT1}, s{sTT}, 1", f"s_lshl1_add_u32 s{sT0}, s{sRB}, s{sT1}", f"s_lshl2_add_u32 s{sT0}, s{sT0}, s{sHH}",
          f"s_mul_i32 s{sT0}, s{sT0}, {8*self.SO}", f"s_add_u32 s{sQ}, s{sT0}, {WS_O + 16*self.SO*FIRST}",
          f"s_add_u32 s{sQ+1}, s{sT0}, {WS_O + 16*self.SO*(1-FIRST)}")
        k(f"v_mov_b32 v{vT1}, {L_MSG}")
        OT = self.opt("otouch", 0)
        if OT:
            k(f"s_lshl1_add_u32 s{sT0}, s{sCB}, s{sW_}", f"s_lshl_b32 s{sT0}, s{sT0}, 6", f"v_add_u32 v{vT0}, s{sT0}, v{vL}")
            k(f"v_mul_u32_u24 v{vT2}, 9363, v{vT0}", f"v_lshrrev_b32 v{vT2}, 17, v{vT2}")
            k(f"v_lshl_add_u32 v{vT0}, v{vT2}, 1, v{vT0}", f"v_lshlrev_b32 v5, 7, v{vT0}")
            k(f"s_lshl_b32 s{sD+1}, s{sRB}, 17", f"s_add_u32 s{sD+1}, s{sD+1}, {WS_O}")
        for n in range(7):
            rdW(n)
            if wq:
                tokW = w2o(wq.pop(0))
            elif amid:
                l = self.lab("am")
                st_ = k.state()
                k(f"s_cmp_eq_u32 s{sBR}, 0")
                k(f"s_cbranch_scc0 {l}")
                self.dma_w2_mid(0, amid.pop(0))
                k(f"{l}:")
                k.restore(st_)
        toks = []

        def ldO(n):
            p, i = divmod(n, 7)
            if i < 6:
                off = 2 * self.SO * i if i < 4 else 4 * self.SO * (i - 4)
                so = sQ + p
                if off:
                    k(f"s_add_u32 s{sT2}, s{so}, {off}")
                    so = sT2
                toks.append(k(f"buffer_load_dwordx4 {vr(OF(n),4)}, v{OAD + (i >= 4)}, {srd(SRD_WS)}, s{so} offen offset:{1024*(i >= 4)} sc1"))
            else:
                k(f"buffer_load_dwordx2 {vr(OF(n),2)}, v{OAD+2}, {srd(SRD_WS)}, s{sQ+p} offen offset:1536 sc1")
                toks.append(k(f"buffer_load_dwordx2 {vr(OF(n)+2,2)}, v{OAD+3}, {srd(SRD_WS)}, s{sQ+p} offen offset:1536 sc1"))

        def spin(mask, tell, fresh):
            assert self.opt("cnt3", 1) and mask == "0xffff" and fresh
            l, e = self.lab("fs"), self.lab("fe")
            HT = self.opt("htouch", 0)
            k(f"s_cmp_eq_u32 s{sW_}, 1")
            k(f"s_cbranch_scc0 {e}")
            k(f"s_mov_b32 s{sCNT}, 0")
            if HT:
                k(f"s_lshl_b32 s{sT0}, s{sCB}, 6", f"v_add_u32 v{vT0}, s{sT0}, v{vL}")
                k(f"v_mul_u32_u24 v{vT2}, 9363, v{vT0}", f"v_lshrrev_b32 v{vT2}, 17, v{vT2}")
                if self.SO == 2048:
                    k(f"v_lshl_add_u32 v{vT0}, v{vT2}, 1, v{vT0}")
                k(f"v_and_b32 v{vT2}, 16, v{vT2}", f"v_mul_u32_u24 v{vT2}, {self.SO // 128}, v{vT2}", f"v_add_lshl_u32 v5, v{vT0}, v{vT2}, 7")
                k(f"s_mul_i32 s{sD+1}, s{sRB}, {64*self.SO}", f"s_add_u32 s{sD+1}, s{sD+1}, {WS_O}")
                assert HT == 1
                k(f"s_mov_b32 s{sT1}, {[0, 0x8, 0x800, 0x808][HT]}")
            k(f"v_mov_b32 v{vPV}, 0")
            k("s_mov_b64 exec, 1")
            for _ in range(self.opt('pdepth', 3)):
                k.uncounted(f"buffer_atomic_umax v{vPV}, v{vFP}, {srd(SRD_WS)}, 0 offen sc0 sc1 ; spin")
            k(f"{l}:")
            k("s_mov_b64 exec, 1")
            k.uncounted(f"buffer_atomic_umax v{vPV}, v{vFP}, {srd(SRD_WS)}, 0 offen sc0 sc1 ; spin")
            k("s_mov_b64 exec, -1")
            k(f"s_add_u32 s{sCNT}, s{sCNT}, 1")
            k(f"s_waitcnt vmcnt({self.opt('pdepth', 3)}) ; spin")
            k(f"v_readfirstlane_b32 s{sT0}, v{vPV}")
            k(f"s_cmp_eq_u32 s{sT0}, 0x808")
            k(f"s_cbranch_scc1 {e}")
            if HT:
                k(f"s_and_b32 s{sT0}, s{sT0}, s{sT1}")
                k(f"s_cbranch_scc0 {l}n")
                k(f"s_mov_b32 s{sT1}, 0")
                k(f"s_and_b32 s{sT0}, s{sT0}, 0x800", f"s_lshl4_add_u32 s{sT0}, s{sT0}, s{sD+1}")
                k.uncounted(f"buffer_load_dword v{vT2}, v5, {srd(SRD_WS)}, s{sT0} offen sc1 ; spin")
                k(f"{l}n:")
            k(f"s_cmp_lt_u32 s{sCNT}, 0x8000")
            k(f"s_cbranch_scc1 {l}")
            k(f"{e}:")
        todo = [(n, jj) for n in range(7, 14) for jj in range(4)]

        def body(n, limit, todo, rate):
            assert not any(m <= n for m, _ in todo)
            k.wait(vm=toks[n], lg=tw[n] if n >= 7 else None)
            for jj in range(4):
                acc = ACC[0] + 4 * jj
                if not self.opt("x_nomm", 0) or n == 0:
                    k(f"v_mfma_f32_16x16x32_bf16 {vr(acc,4)}, {vr(WB(n)+4*jj,4)}, {vr(OF(n),4)}, {'0' if n == 0 else vr(acc,4)}")
                if n % 2 == 1 and jj == 0:
                    self.stamp(step=108 + n // 2)
                if jj == 0 and len(toks) < limit:
                    ldO(len(toks))
                    if len(toks) == 7 and limit == 7:
                        self.final_peek()
                if 1 <= jj <= rate and todo and todo[0][0] - NB < n:
                    m, j2 = todo.pop(0)
                    rdW(m, [j2])
        if self.opt("split", 0) == 2:
            RATE = self.opt("wrate", 3)
            sBOTH = sD + 1
            FM = 0x800 if FIRST else 0x8

            def look():
                k("s_mov_b64 exec, 1")
                k(f"v_mov_b32 v{vPV}, 0")
                k.uncounted(f"buffer_atomic_or v{vPV}, v{vFP}, {srd(SRD_WS)}, 0 offen sc0 sc1 ; spin")
                k("s_mov_b64 exec, -1")

            def spin2(first, nyoung):
                l, e = self.lab("gs"), self.lab("ge")
                if first:
                    k(f"s_mov_b32 s{sBOTH}, 0x808")
                    k(f"s_cmp_eq_u32 s{sW_}, 1")
                    k(f"s_cbranch_scc0 {e}")
                    k(f"s_mov_b32 s{sCNT}, 0")
                else:
                    k(f"s_cmp_eq_u32 s{sBOTH}, 0x808")
                    k(f"s_cbranch_scc1 {e}")
                    k(f"s_waitcnt vmcnt({nyoung}) ; spin")
                    k(f"s_branch {l}x ; spin")
                k(f"{l}:")
                look()
                k("s_waitcnt vmcnt(0) ; spin")
                k(f"{l}x:")
                k(f"v_readfirstlane_b32 s{sBOTH}, v{vPV}")
                k(f"s_add_u32 s{sCNT}, s{sCNT}, 1")
                if first:
                    k(f"s_and_b32 s{sT0}, s{sBOTH}, {FM}")
                else:
                    k(f"s_cmp_eq_u32 s{sBOTH}, 0x808")
                k(f"s_cbranch_scc1 {e}")
                k(f"s_cmp_lt_u32 s{sCNT}, 0x8000")
                k(f"s_cbranch_scc1 {l}")
                k(f"{e}:")
            spin2(True, 0)
            k("s_waitcnt lgkmcnt(0)")
            k("s_barrier")
            self.stamp(step=107)
            for n in range(NA):
                ldO(n)
            l = self.lab("pk")
            k(f"s_cmp_eq_u32 s{sBOTH}, 0x808")
            k(f"s_cbranch_scc1 {l}")
            look()
            k(f"{l}:")
            npk = k.nvm
            self.stamp()
            G2 = 7 - NA
            for n in range(7):
                if n == G2:
                    spin2(False, k.nvm - npk)
                    k("s_barrier")
                body(n, 14, todo if n >= G2 else [], RATE)
            self.stamp()
            return self.final_tail(body, todo, RATE, ACC, WB)
        sp = self.opt("split", 0)
        self.stamp(step=104)
        NG = self.opt("nogate", 0)
        spin("0xff" if sp else "0xffff", sp, True)
        self.stamp(step=105)
        if self.opt("pdepth", 3) and not NG:
            k(f"s_cmp_eq_u32 s{sW_}, 1")
            k("s_cbranch_scc1 L_w2ok")
            k.wait(vm=tokW)
            k("L_w2ok:")
            k.wait(lg=0)
        else:
            k.wait(vm=None if NG else tokW, lg=0)
        self.stamp(step=106)
        k("s_barrier")
        self.stamp(step=107)
        if OT:
            assert not sp
            k(f"s_cmp_lt_u32 s{sW_}, 2")
            k("s_cbranch_scc0 L_not")
            k.uncounted(f"buffer_load_dword v{vPV}, v5, {srd(SRD_WS)}, s{sD+1} offen sc1 ; spin")
            k("L_not:")
            if OT == 2:
                k("s_barrier")
        for n in range(NA):
            ldO(n)
        if NG:
            k.wait(vm=tokW)
            k("s_barrier")
        if sp:
            k(f"ds_read_b32 v{vT0}, v{vT1}")
            k("s_waitcnt lgkmcnt(0)")
            k(f"v_readfirstlane_b32 s{sM}, v{vT0}")
        for _ in range(self.opt("w0", 8)):
            m, j2 = todo.pop(0)
            rdW(m, [j2])
        self.stamp()
        RATE = self.opt("wrate", 2)
        if sp:
            k(f"s_and_b32 s{sM}, s{sM}, 0xff00")
            k("s_cbranch_scc1 L_fB")
        st = k.state(); t0 = list(toks); td = list(todo)
        for n in range(7):
            body(n, 14, todo, RATE)
        if sp:
            k("s_branch L_f4")
            k("L_fB:")
            k.restore(st); toks[:] = t0
            for n in range(7):
                body(n, 7, td, RATE)
            spin("0xffff", False, False)
            k("s_barrier")
            for n in range(NA):
                ldO(7 + n)
            k("L_f4:")
        self.stamp()
        self.final_tail(body, todo, RATE, ACC, WB)

    def final_tail(self, body, todo, RATE, ACC, WB):
        k = self.k
        vE0, vE1 = 3, 4
        osc = ['', 'sc1', 'nt', 'sc1 nt'][self.o.get('osc', 1)]
        A0 = ACC[0]
        AS = self.opt("asym", 2)
        if AS >= 0:
            k(f"s_lshl_b32 s{sT0}, s{sTT}, 12", f"s_add_u32 s{sT0}, s{sT0}, {L_EX}", f"v_add_u32 v{vE0}, s{sT0}, v{vL16}")
            k(f"v_xor_b32 v{vE1}, 64, v{vFS}")
            for n in range(7, 14 - AS):
                body(n, 14, todo, RATE)
            assert not todo
            k(f"s_cmp_eq_u32 s{sHH}, 0")
            k("s_cbranch_scc0 L_take")
            st = k.state()
            for n in range(14 - AS, 14):
                body(n, 14, todo, RATE)
            for j in range(4):
                k(f"ds_write_b128 v{vE0}, {vr(A0+4*j,4)} offset:{1024*(j ^ 2)}")
            k("s_waitcnt lgkmcnt(0)")
            k("s_barrier")
            k("s_branch L_done")
            k("L_take:")
            k.restore(st)
            k("s_barrier")
            PA = WB(14 - AS - 2)
            for j in range(4):
                t = k(f"ds_read_b128 {vr(PA+4*j,4)}, v{vE0} offset:{1024*j}")
            for n in range(14 - AS, 14):
                body(n, 14, todo, RATE)
            self.stamp()
            k.wait(lg=t)
            for h in range(2):
                for i in range(8 * h, 8 * h + 8):
                    k(f"v_add_f32 v{A0+i}, v{A0+i}, v{PA+i}")
                for i in range(4):
                    k(f"v_cvt_pk_bf16_f32 v{PA+4*h+i}, v{A0+8*h+2*i}, v{A0+8*h+2*i+1}")
                k(f"v_permlane16_swap_b32 v{PA+4*h}, v{PA+4*h+2}")
                k(f"v_permlane16_swap_b32 v{PA+4*h+1}, v{PA+4*h+3}")
                k(f"buffer_store_dwordx4 {vr(PA+4*h,4)}, v{vE1 if h else vFS}, {srd(SRD_O)}, 0 offen {osc}")
            k("L_done:")
            return
        k(f"v_add_u32 v{vE0}, s{sW2K}, v{vL16}", f"v_add_u32 v{vE0}, {L_EX}, v{vE0}", f"v_xor_b32 v{vE1}, 8192, v{vE0}")
        for n in range(7, 14):
            body(n, 14, todo, RATE)
        assert not todo
        self.stamp()
        for h in range(2):
            k(f"ds_write_b128 v{vE0}, {vr(A0+8+4*h,4)} offset:{1024*h}")
        k("s_waitcnt lgkmcnt(0)")
        k("s_barrier")
        k(f"ds_read_b128 {vr(A0+8,4)}, v{vE1}")
        k(f"ds_read_b128 {vr(A0+12,4)}, v{vE1} offset:1024")
        k("s_waitcnt lgkmcnt(0)")
        for i in range(8):
            k(f"v_add_f32 v{A0+i}, v{A0+i}, v{A0+8+i}")
        for i in range(4):
            k(f"v_cvt_pk_bf16_f32 v{A0+8+i}, v{A0+2*i}, v{A0+2*i+1}")
        k(f"v_permlane16_swap_b32 v{A0+8}, v{A0+10}")
        k(f"v_permlane16_swap_b32 v{A0+9}, v{A0+11}")
        k(f"buffer_store_dwordx4 {vr(A0+8,4)}, v{vFS}, {srd(SRD_O)}, 0 offen {osc}")

    def write_stamps(self):
        if not self.o.get("stamps"):
            return
        k = self.k
        self.stamp()
        k("s_waitcnt vmcnt(0)")
        self.stamp()
        self.stamp(step=200)
        k(f"s_memrealtime s[{sT2}:{sT2+1}]")
        k("s_waitcnt lgkmcnt(0)")
        if "diag" in self.o:
            n = self.o["diag"]
            if n >= 0:
                base = 101 if "diag0" not in self.o else STAMP_REGS[self.o["diag0"]]
                k(f"s_sub_u32 s{sT0}, s{STAMP_REGS[n]}, s{base}")
                if "diagwg" in self.o:
                    k(f"s_cmp_eq_u32 s2, {self.o['diagwg']}")
                    k(f"s_cselect_b32 s{sT0}, s{sT0}, 0")
                if "diagbr" in self.o:
                    k(f"s_cmp_eq_u32 s{sBR}, {self.o['diagbr']}")
                    k(f"s_cselect_b32 s{sT0}, s{sT0}, 0")
                k(f"s_lshl_b32 s{sT0}, s{sT0}, 2")
                k(f"s_min_u32 s{sT0}, s{sT0}, 10000")
                k(f"s_add_u32 s{sT0}, s{sT0}, s{sT2}")
                k("L_diag:")
                k(f"s_memrealtime s[{sT2}:{sT2+1}]")
                k("s_waitcnt lgkmcnt(0)")
                k(f"s_sub_u32 s{sT1}, s{sT2}, s{sT0}")
                k(f"s_cmp_lt_i32 s{sT1}, 0")
                k("s_cbranch_scc1 L_diag")
            return
        k(f"s_lshl_b32 s{sT0}, s2, 3")
        k(f"s_add_u32 s{sT0}, s{sT0}, s{sW_}")
        k(f"s_lshl_b32 s{sT0}, s{sT0}, 6")
        k(f"s_add_u32 s{sT0}, s{sT0}, {WS_STAMP}")
        k("s_mov_b64 exec, 1")
        k("v_mov_b32 v1, 0")
        assert self.nstamp <= 14
        for n in range(self.nstamp):
            k(f"s_sub_u32 s{sT1}, s{STAMP_REGS[n]}, s{101 if self.o['stamps'] == 2 else 100}")
            k(f"v_mov_b32 v2, s{sT1}")
            k(f"buffer_store_dword v2, v1, {srd(SRD_WS)}, s{sT0} offen offset:{4*n}")
        k(f"v_mov_b32 v2, s101")
        k(f"v_mov_b32 v3, s{sT2}")
        k(f"buffer_store_dwordx2 v[2:3], v1, {srd(SRD_WS)}, s{sT0} offen offset:56")

    def kernel_main(self):
        k = self.k
        self.entry()
        st = k.state(); ns = self.nstamp; tx = dict(self.tokx)
        if self.opt("bfirst", 0):
            self.path_b()
            nb = self.nstamp
            k("L_join:")
            self.final_stage()
            self.write_stamps()
            k("L_exit:")
            k("s_endpgm")
            cold_b, self.cold = self.cold, []
            tb_, ub_ = (self.tokx, self.toku), self.ubase
            k(".p2align 6")
            k.restore(st); self.nstamp = ns; self.tokx = tx; self.toku = {}
            self.path_a()
            if self.o.get("ss") is None:
                assert nb == self.nstamp
            k("s_branch L_join")
            self.emit_cold()
            self.fm_slow("k")
            self.fm_slow("q")
            self.cold = cold_b; (self.tokx, self.toku), self.ubase = tb_, ub_
            self.emit_cold()
            return
        self.path_a()
        na = self.nstamp
        k("s_branch L_join")
        self.emit_cold()
        BA = self.opt("balign", 1)
        if self.opt("visit", 2):
            k(".p2align 12")
        elif BA:
            k(f".fill ((0x10000 - (. - L_text) - (L_bpage - L_path_b)) & 0xfff) >> 2, 4, 0xbf810000")
        else:
            self.fm_slow("k")
            self.fm_slow("q")
            k(".p2align 6")
        k.restore(st); self.nstamp = ns; self.tokx = tx; self.toku = {}
        self.path_b()
        if self.o.get("ss") is None:
            assert na == self.nstamp, (na, self.nstamp)
        self.nstamp = max(na, self.nstamp)
        if self.opt("visit", 2):
            self.page("ab_f")
        elif self.opt("fpage", 1):
            k("s_branch L_join")
            k(".p2align 12")
        k("L_join:")
        self.final_stage()
        self.write_stamps()
        k("L_exit:")
        k("s_endpgm")
        self.cold.sort(key=lambda c: "spin" not in c[1].__name__)
        self.emit_cold()
        if BA:
            self.fm_slow("k")
            self.fm_slow("q")


HEADER = open("cdna_kernels/" + NAME + ".s.ref").read().split("; Override")[0]


DOC = """;
; One launch, 256 workgroups (one per CU, 8 waves).  Generated by a script of the author (no compiler output).
;   stage 3 : 64x64 tiles of out = o_A A_wo + o_B B_wo
;   softmax : exponentials are first taken unshifted; a run-time check of every row sum sends the wave to a second
"""


def desc(name, vg=256):
    return f""".amdhsa_kernel {name}
  .amdhsa_next_free_vgpr {vg}
  .amdhsa_next_free_sgpr 102
  .amdhsa_accum_offset {vg}
  .amdhsa_group_segment_fixed_size 0
  .amdhsa_kernarg_size 88
  .amdhsa_user_sgpr_count 2
  .amdhsa_user_sgpr_kernarg_segment_ptr 1
  .amdhsa_system_sgpr_workgroup_id_x 1
.end_amdhsa_kernel
"""


def finish(g, verbose=False):
    n = g.k.pad_hazards(verbose)
    errs = g.k.check_waits()
    for e in errs[:10]:
        print("WAIT?", e, file=sys.stderr)
    return g.k.text(), n


def build(opt):
    g = Gen(opt)
    g.kernel_main()
    body, n = finish(g, opt.get("verbose"))
    body = body.replace(" ; spin", "")
    kn = NAME + "_kernel"
    out = HEADER
    out += f"; @launch grid=(256,1,1) block=(512,1,1) lds={L_TOTAL}\n"
    out += DOC
    out += '.amdgcn_target "amdgcn-amd-amdhsa--gfx950"\n.text\n'
    out += ".p2align 12\nL_text:\n"
    if opt.get("pad"):
        out += f".fill {opt['pad']//4}, 4, 0xbf810000\n"
    out += f".globl {kn}\n.p2align 8\n.type {kn},@function\n{kn}:\n" + body + "L_code_end:\n"
    if opt.get("pre", 1):
        out += ".set CODE_BYTES, L_code_end - L_pc - 4\n"
    out += '.section .rodata,"a"\n.p2align 6\n' + desc(kn)
    return out


if __name__ == "__main__":
    opt = {}
    path = "cdna_kernels/" + NAME + ".s"
    for a in sys.argv[1:]:
        if "=" in a:
            kk, v = a.split("=")
            if kk == "out":
                path = v
            else:
                opt[kk] = int(v) if v.lstrip("-").isdigit() and kk not in ("bw2s", "bqs", "bbar", "abar") else v
    open(path, "w").write(build(opt))
    print("wrote", path)
```
